```python
import torch

def _softmax(x, axis=-1):
    return torch.softmax(x, dim=axis)
def _gelu(x):
    return torch.nn.functional.gelu(x, approximate="tanh")
def _silu(x):
    return torch.nn.functional.silu(x)
def _sigmoid(x):
    return torch.sigmoid(x)
def _layernorm(x, axis=-1, eps=1e-5):
    m = x.mean(dim=axis, keepdim=True)
    v = x.var(dim=axis, keepdim=True, unbiased=False)
    return (x - m) / torch.sqrt(v + eps)
def _scatter_add(tgt, idx, src, axis=0):
    return tgt.clone().index_add_(axis, idx, src)
def _segment_sum(src, seg, n):
    out = torch.zeros((n,) + src.shape[1:], dtype=src.dtype)
    return out.index_add_(0, seg, src)
def _pad(x, pw):
    flat = tuple(v for pair in reversed(pw) for v in pair)
    return torch.nn.functional.pad(x, flat)

kernel_name = 'interleave_layers__gqa_block_cached__dense_activation_silu__decode'

def setup_inputs():

    _w = (lambda a: (lambda t: t.to(torch.bfloat16) if t.is_floating_point() else t)(torch.as_tensor(a)))
    def _A_setup():
        B, Sq, D = 2, 1, 640
        Hq, Hkv, Sk, Dh = 32, 32, 8192, 128
        assert Hq % Hkv == 0, (Hq, Hkv)
        return {
            "x": _w((lambda *s: torch.randn(*s, dtype=torch.bfloat16) * 0.1)(B, Sq, D)),
            "k_cache": _w((lambda *s: torch.randn(*s, dtype=torch.bfloat16) * 1.6)(B, Hkv, Sk, Dh)),
            "v_cache": _w((lambda *s: torch.randn(*s, dtype=torch.bfloat16) * 3.2)(B, Hkv, Sk, Dh)),
            "wq": _w((lambda *s: torch.randn(*s, dtype=torch.bfloat16) * 1.6)(D, Hq * Dh) * (D ** -0.5)),
            "wo": _w((lambda *s: torch.randn(*s, dtype=torch.bfloat16) * 3.2)(Hq * Dh, D) * ((Hq * Dh) ** -0.5)),
        }
    _A_in = _A_setup()

    def _B_setup():
        B, S, D, F = 2, 1, 640, 1728
        return {
            "x": _w((lambda *s: torch.randn(*s, dtype=torch.bfloat16) * 0.1)(B, S, D)),
            "w1": _w((lambda *s: torch.randn(*s, dtype=torch.bfloat16) * 3.2)(D, F) * (D ** -0.5)),
            "w2": _w((lambda *s: torch.randn(*s, dtype=torch.bfloat16) * 0.8)(F, D) * (F ** -0.5)),
        }
    _B_in = _B_setup()

    return {
        "A_x": _A_in["x"],
        "A_k_cache": _A_in["k_cache"],
        "A_v_cache": _A_in["v_cache"],
        "A_wq": _A_in["wq"],
        "A_wo": _A_in["wo"],
        "B_x": _B_in["x"],
        "B_w1": _B_in["w1"],
        "B_w2": _B_in["w2"],
    }

def reference(A_x, A_k_cache, A_v_cache, A_wq, A_wo, B_x, B_w1, B_w2):
    def _A_ref(x, k_cache, v_cache, wq, wo):
        B, Sq, D = x.shape
        Hq, Dh = 32, 128
        Hkv = k_cache.shape[1]
        rep = Hq // Hkv
        q = (lambda x, *d: x.permute(*d))((x @ wq).reshape(B, Sq, Hq, Dh), 0, 2, 1, 3)
        k = (lambda x, n, axis: torch.repeat_interleave(x, n, dim=axis))(k_cache, rep, axis=1)
        v = (lambda x, n, axis: torch.repeat_interleave(x, n, dim=axis))(v_cache, rep, axis=1)
        scores = torch.einsum("bhqd,bhkd->bhqk", q, k) * (Dh ** -0.5)
        p = _softmax(scores, axis=-1)
        o = torch.einsum("bhqk,bhkd->bhqd", p, v)
        return (lambda x, *d: x.permute(*d))(o, 0, 2, 1, 3).reshape(B, Sq, Hq * Dh) @ wo

    def _B_ref(x, w1, w2):
        h = torch.einsum("bsd,df->bsf", x, w1)
        h = _silu(h)
        out = torch.einsum("bsf,fd->bsd", h, w2)
        return out

    x = A_x
    x = x + _A_ref(_layernorm(x, axis=-1), A_k_cache, A_v_cache, A_wq, A_wo)
    x = x + _B_ref(_layernorm(x, axis=-1), B_w1, B_w2)
    x = x + _A_ref(_layernorm(x, axis=-1), A_k_cache, A_v_cache, A_wq, A_wo)
    x = x + _B_ref(_layernorm(x, axis=-1), B_w1, B_w2)
    return x
```

```python
import re

TRANS = ("v_exp_f32", "v_log_f32", "v_rcp_f32", "v_rsq_f32", "v_sqrt_f32", "v_sin_f32", "v_cos_f32")

def _expand(tok):
    tok = tok.strip()
    m = re.fullmatch(r"([vas])\[(\d+):(\d+)\]", tok)
    if m:
        return [f"{m.group(1)}{i}" for i in range(int(m.group(2)), int(m.group(3)) + 1)]
    m = re.fullmatch(r"([vas])(\d+)", tok)
    if m:
        return [tok]
    if tok in ("vcc", "vcc_lo", "vcc_hi"):
        return ["vcc"]
    if tok in ("exec", "exec_lo", "exec_hi"):
        return ["exec"]
    if tok == "m0":
        return ["m0"]
    m = re.fullmatch(r"-?\|?([vas]\d+)\|?", tok)
    if m:
        return [m.group(1)]
    return []

class Ins:
    def __init__(self, text):
        self.text = text
        t = text.split(";")[0].strip()
        self.label = t.endswith(":")
        self.op = t.split()[0] if t and not self.label else ""
        rest = t[len(self.op):].strip() if not self.label else ""
        parts = [p.strip() for p in rest.split(",")] if rest else []
        ops = []
        for p in parts:
            ops.append(p.split()[0] if p else p)
        self.mods = rest
        self.operands = ops
        op = self.op
        self.kind = "other"
        self.w = set(); self.r = set()
        self.dpp = False; self.trans = False; self.lds_dma = False; self.wide_store = None
        self.srcc = set(); self.srcab = set()
        if op.startswith("v_mfma"):
            self.kind = "mfma"
            self.w = set(_expand(ops[0]))
            self.srcab = set(_expand(ops[1])) | set(_expand(ops[2]))
            self.srcc = set(_expand(ops[3]))
            self.r = self.srcab | self.srcc
        elif op.startswith("v_cmp"):
            self.kind = "valu"
            self.w = set(_expand(ops[0]))
            for o in ops[1:]: self.r |= set(_expand(o))
        elif op.startswith("v_readlane") or op.startswith("v_readfirstlane"):
            self.kind = "readlane"
            self.w = set(_expand(ops[0]))
            for o in ops[1:]: self.r |= set(_expand(o))
        elif op.startswith("v_permlane"):
            self.kind = "permlane"
            self.w = set(_expand(ops[0])) | set(_expand(ops[1]))
            self.r = set(self.w)
        elif op.startswith("v_"):
            self.kind = "valu"
            self.w = set(_expand(ops[0]))
            for o in ops[1:]: self.r |= set(_expand(o))
            if "fmac" in op or "_dpp" in op or "v_fmac" in op or "v_pk_fmac" in op or "writelane" in op:
                self.r |= self.w
            if op.startswith("v_cndmask") and len(ops) == 3:
                self.r.add("vcc")
            if op.startswith("v_add_co") or op.startswith("v_sub_co"):
                self.w |= set(_expand(ops[1]))
            if op.startswith("v_addc_co"):
                self.w |= set(_expand(ops[1]))
            self.dpp = "_dpp" in op
            self.trans = op.replace("_e32", "").replace("_e64", "") in TRANS
        elif op.startswith("buffer_") or op.startswith("global_"):
            self.kind = "vmem"
            is_store = "store" in op
            is_atomic = "atomic" in op
            self.lds_dma = bool(re.search(r"\blds\b", rest))
            if op.startswith("buffer_"):
                if self.lds_dma:
                    for o in ops: self.r |= set(_expand(o))
                    self.r.add("m0")
                elif is_store or is_atomic:
                    for o in ops: self.r |= set(_expand(o))
                    if re.search(r"x[34]$", op): self.wide_store = set(_expand(ops[0]))
                else:
                    self.w = set(_expand(ops[0]))
                    for o in ops[1:]: self.r |= set(_expand(o))
            else:
                if is_store or is_atomic:
                    for o in ops: self.r |= set(_expand(o))
                    if re.search(r"x[34]$", op): self.wide_store = set(_expand(ops[1]))
                else:
                    self.w = set(_expand(ops[0]))
                    for o in ops[1:]: self.r |= set(_expand(o))
        elif op.startswith("ds_"):
            self.kind = "ds"
            if op.startswith("ds_read"):
                self.w = set(_expand(ops[0]))
                for o in ops[1:]: self.r |= set(_expand(o))
            else:
                for o in ops: self.r |= set(_expand(o))
        elif op.startswith("s_"):
            self.kind = "salu"
            if op in ("s_nop", "s_waitcnt", "s_barrier", "s_endpgm", "s_setprio", "s_sleep") or op.startswith("s_cbranch") or op == "s_branch":
                self.kind = "ctl"
            elif op.startswith("s_cmp") or op.startswith("s_bitcmp"):
                for o in ops: self.r |= set(_expand(o))
            elif op.startswith("s_load") or op.startswith("s_memrealtime") or op.startswith("s_memtime"):
                self.kind = "smem"
                self.w = set(_expand(ops[0])) if ops else set()
                for o in ops[1:]: self.r |= set(_expand(o))
            else:
                self.w = set(_expand(ops[0])) if ops else set()
                for o in ops[1:]: self.r |= set(_expand(o))
        self.states = 1
        if op == "s_nop":
            self.states = int(ops[0], 0) + 1

def is_vg(r): return r[0] in "va" and r[1:].isdigit()
def is_sg(r): return (r[0] == "s" and r[1:].isdigit()) or r == "vcc"

class Hazard:
    def __init__(self):
        self.valu_w = {}
        self.trans_w = {}
        self.mfma_w = {}
        self.mfma_c = {}
        self.sg_w = {}
        self.m0_w = None
        self.store_d = {}
    def tick(self, n):
        for d in (self.valu_w, self.trans_w, self.mfma_c, self.sg_w, self.store_d):
            for k in list(d):
                d[k] += n
                if d[k] > 12: del d[k]
        for k in list(self.mfma_w):
            a, s = self.mfma_w[k]
            a += n
            if a > 12: del self.mfma_w[k]
            else: self.mfma_w[k] = (a, s)
        if self.m0_w is not None:
            self.m0_w += n
            if self.m0_w > 4: self.m0_w = None
    def need(self, ins):
        n = 0
        def req(age, w):
            nonlocal n
            if age < w: n = max(n, w - age)
        k = ins.kind
        isvalu = k in ("valu", "readlane", "permlane")
        if isvalu:
            for r in ins.r:
                if is_vg(r):
                    if r in self.valu_w:
                        if ins.dpp: req(self.valu_w[r], 2)
                        if k == "permlane": req(self.valu_w[r], 2)
                        if k == "readlane": req(self.valu_w[r], 1)
                    if r in self.trans_w and not ins.trans: req(self.trans_w[r], 1)
                    if r in self.mfma_w: req(self.mfma_w[r][0], 8)
                elif is_sg(r) and r in self.sg_w:
                    req(self.sg_w[r], 4 if k == "readlane" else 2)
            for r in ins.w:
                if is_vg(r):
                    if r in self.mfma_w: req(self.mfma_w[r][0], 8)
                    if r in self.mfma_c: req(self.mfma_c[r], 3)
                    if r in self.store_d: req(self.store_d[r], 2)
        elif k == "mfma":
            for r in ins.srcab:
                if r in self.valu_w: req(self.valu_w[r], 2)
                if r in self.mfma_w: req(self.mfma_w[r][0], 8)
            for r in ins.srcc:
                if r in self.valu_w: req(self.valu_w[r], 2)
                if r in self.mfma_w:
                    a, s = self.mfma_w[r]
                    if s != frozenset(ins.srcc): req(a, 6)
            for r in ins.w:
                if r in self.mfma_w:
                    a, s = self.mfma_w[r]
                    if not (s == frozenset(ins.w) and ins.srcc == ins.w): req(a, 6)
                if r in self.valu_w: req(self.valu_w[r], 2)
        elif k in ("vmem", "ds"):
            for r in ins.r:
                if is_vg(r) and r in self.mfma_w: req(self.mfma_w[r][0], 8)
                if is_sg(r) and r in self.sg_w and k == "vmem": req(self.sg_w[r], 5)
                if is_vg(r) and r in self.trans_w: req(self.trans_w[r], 1)
            for r in ins.w:
                if r in self.mfma_w: req(self.mfma_w[r][0], 8)
                if r in self.mfma_c: req(self.mfma_c[r], 3)
                if r in self.store_d: req(self.store_d[r], 1)
            if ins.lds_dma and self.m0_w is not None: req(self.m0_w, 1)
        elif k in ("salu", "smem"):
            for r in ins.r:
                if r in self.sg_w: req(self.sg_w[r], 1)
        return n
    def pending(self):
        n = 0
        for a in self.valu_w.values(): n = max(n, 2 - a)
        for a in self.trans_w.values(): n = max(n, 1 - a)
        for a, s in self.mfma_w.values(): n = max(n, 8 - a)
        for a in self.mfma_c.values(): n = max(n, 3 - a)
        for a in self.sg_w.values(): n = max(n, 5 - a)
        for a in self.store_d.values(): n = max(n, 2 - a)
        if self.m0_w is not None: n = max(n, 1 - self.m0_w)
        return n
    def issue(self, ins):
        self.tick(ins.states)
        k = ins.kind
        if k in ("valu", "readlane", "permlane"):
            for r in ins.w:
                if is_vg(r):
                    self.valu_w[r] = 0
                    if ins.trans: self.trans_w[r] = 0
                    else: self.trans_w.pop(r, None)
                    self.mfma_w.pop(r, None)
                elif is_sg(r): self.sg_w[r] = 0
        elif k == "mfma":
            s = frozenset(ins.w)
            for r in ins.w:
                self.mfma_w[r] = (0, s); self.valu_w.pop(r, None)
            for r in ins.srcc: self.mfma_c[r] = 0
        elif k == "vmem":
            if ins.wide_store:
                for r in ins.wide_store: self.store_d[r] = 0
        elif k == "salu":
            if "m0" in ins.w: self.m0_w = 0
            for r in ins.w: self.sg_w.pop(r, None)

class Asm:
    def __init__(self):
        self.lines = []
        self.nlabel = 0
    def __call__(self, text):
        for t in text.split("\n"):
            t = t.strip()
            m = re.fullmatch(r"s_mov_b64 exec, (0x[0-9a-fA-F]+|\d+)", t)
            if m:
                val = int(m.group(1), 0)
                if val > 64:
                    self.lines.append(f"s_mov_b32 exec_lo, {val & 0xffffffff:#x}")
                    self.lines.append(f"s_mov_b32 exec_hi, {val >> 32:#x}")
                    continue
            if t: self.lines.append(t)
    def label(self, name): self.lines.append(name + ":")
    def newlabel(self, base="L"):
        self.nlabel += 1
        return f"{base}_{self.nlabel}"
    def finish(self):
        out = []
        hz = Hazard()
        nnop = 0
        def nops(n):
            nonlocal nnop
            while n > 0:
                c = min(n, 16)
                t = f"s_nop {c-1}"
                out.append("    " + t); hz.issue(Ins(t)); n -= c; nnop += 1
        for t in self.lines:
            if t.startswith(";") or t.startswith("."):
                out.append(t); continue
            ins = Ins(t)
            if ins.label:
                nops(hz.pending())
                out.append(t); continue
            if ins.op.startswith("s_cbranch") or ins.op == "s_branch" or ins.op.startswith("s_setpc"):
                nops(max(0, hz.pending() - 1))
            else:
                nops(hz.need(ins))
            out.append("    " + t)
            hz.issue(ins)
        self.nnop = nnop
        return "\n".join(out) + "\n"
```

```python
import sys, argparse
from asmlib import Asm

NAME = "interleave_layers__gqa_block_cached__dense_activation_silu__decode_kernel"

class Cfg:
    nR = 0
    nLds = 0
    window = 63
    kv_flags = "nt"
    w_flags = ""
    debug = False
    dbg_phase = 0
    spin = 40000
    rotmul = 5
    w3_pre = 0

POOL = 0
WO_OFF = 0; W1_OFF = 32768; WQ_OFF = 0; W2_OFF = 20480
VEC_S1 = 53248; VEC_S3 = 48128
XRES = 57344
LNB = XRES + 2560
COMB = LNB
RED = LNB + 2560
QB = RED + 512
CELLS = 63488
LDS_TOTAL = 163840
assert QB + 256 <= CELLS
WQ_TMP = CELLS

E1 = 0;            E1_STRIDE = 640;  E1_L = 256 * 640
E2 = E1 + 2 * E1_L;  E2_L = 160 * 128
E3 = E2 + 2 * E2_L;  E3_L = 108 * 128
E4 = E3 + 2 * E3_L
E5 = E4 + 80 * 128;  E5_L = 256 * 128
E_END = E5 + 2 * E5_L
assert E_END <= 524288
E_SIZE = 524288
DBG_OFF = 1 << 20

sW = "s2"; sWave = "s3"
SRD_K = "s[8:11]"; SRD_V = "s[12:15]"; SRD_E = "s[16:19]"; SRD_W = "s[20:23]"
def sOff(hb): return f"s{24+hb}"
pX = (40, 41); pK = (42, 43); pV = (44, 45); pWQ = (46, 47); pWO = (48, 49); pW1 = (52, 53); pW2 = (54, 55)
pOUT = (56, 57); pDBG = (58, 59); pWS = (60, 61)
sX = "s62"; sY = "s63"
sRole = "s64"
sS1cg = "s65"; sS1kg = "s66"; sS2j = "s67"; sS3j = "s68"; sS4cg = "s69"
sPhase = "s70"
sCaller = "s71"
sLay = "s72"
sT = [f"s{i}" for i in range(74, 90)]
sCnt = "s73"
sWB = "s90"
SRD_D = "s[92:95]"

vLane = "v0"; vOffK = "v1"; vOffV = "v2"; vOffV2 = "v3"
vM = [4, 5, 6, 7]
vQ = 8
vS = 16
vO = 24
vD = 28
vL = 36
vLsum = 52; vMax = 53
vT = list(range(54, 64))

def vr(b, n=1): return f"v{b}" if n == 1 else f"v[{b}:{b+n-1}]"

LOG2E = 0x3fb8aa3b
SCALE = 0x3db504f3

class Cell:
    def __init__(self, kind, base): self.kind = kind; self.base = base
    def reg(self): return f"{self.kind}[{self.base}:{self.base+3}]"
    def __repr__(self): return f"{self.kind}{self.base}"

class K:
    def __init__(self, cfg):
        self.c = cfg
        self.a = Asm()

    def bf16r(self, dst, src):
        a = self.a
        a(f"v_cvt_pk_bf16_f32 v{dst}, v{src}, v{src}")
        a(f"v_and_b32 v{dst}, 0xffff0000, v{dst}")

    def red_all(self, v, t, op):
        a = self.a
        for ctl in ("quad_perm:[1,0,3,2]", "quad_perm:[2,3,0,1]", "row_ror:4", "row_ror:8"):
            a(f"{op}_dpp v{v}, v{v}, v{v} {ctl} row_mask:0xf bank_mask:0xf")
        self.red_rows(v, t, op)

    def red_rows(self, v, t, op):
        a = self.a
        a(f"v_mov_b32 v{t}, v{v}")
        a(f"v_permlane16_swap_b32 v{v}, v{t}")
        a(f"{op} v{v}, v{v}, v{t}")
        a(f"v_mov_b32 v{t}, v{v}")
        a(f"v_permlane32_swap_b32 v{v}, v{t}")
        a(f"{op} v{v}, v{v}, v{t}")

    def sentinel_check(self, regs, t, lab_retry, lab_to=None):
        a = self.a
        regs = list(regs)
        if len(regs) == 1:
            a(f"v_cmp_eq_u32 vcc, -1, v{regs[0]}")
        else:
            if len(regs) == 2:
                a(f"v_max_u32 v{t}, v{regs[0]}, v{regs[1]}"); k = 2
            else:
                a(f"v_max3_u32 v{t}, v{regs[0]}, v{regs[1]}, v{regs[2]}"); k = 3
            while k + 1 < len(regs):
                a(f"v_max3_u32 v{t}, v{t}, v{regs[k]}, v{regs[k+1]}"); k += 2
            if k < len(regs):
                a(f"v_max_u32 v{t}, v{t}, v{regs[k]}")
            a(f"v_cmp_eq_u32 vcc, -1, v{t}")
        done = a.newlabel("L_pd")
        a(f"s_add_u32 {sCnt}, {sCnt}, 1")
        a(f"s_cmp_gt_u32 {sCnt}, {self.c.spin}")
        a(f"s_cbranch_scc1 {done}")
        a(f"s_cbranch_vccnz {lab_retry}")
        a.label(done)

    def srd(self, srd, ptr, nbytes):
        a = self.a
        b = int(srd[2:srd.index(":")])
        a(f"s_mov_b32 s{b}, s{ptr[0]}")
        a(f"s_mov_b32 s{b+1}, s{ptr[1]}")
        a(f"s_mov_b32 s{b+2}, {nbytes}")
        a(f"s_mov_b32 s{b+3}, 0x20000")

    def dbg(self, regs, slot, cond=None):
        if not self.c.debug: return
        a = self.a
        skip = a.newlabel("L_dbgskip")
        a(f"s_cmp_lg_u32 {sPhase}, {self.c.dbg_phase}")
        a(f"s_cbranch_scc1 {skip}")
        a(f"s_lshl_b32 s96, {sW}, 2")
        a(f"s_add_u32 s96, s96, {sWave}")
        a(f"s_lshl_b32 s96, s96, 14")
        a(f"v_lshlrev_b32 v63, 2, {vLane}")
        for k, r in enumerate(regs):
            a(f"s_add_u32 s97, s96, {(slot + k) * 256}")
            a(f"buffer_store_dword v{r}, v63, {SRD_D}, s97 offen")
        a("s_waitcnt vmcnt(0)")
        a.label(skip)

    def dma_loop(self, ptr, nbytes, voff, n, src0, src_step, lds0, k0, step):
        a = self.a
        self.srd(SRD_W, ptr, nbytes)
        t0, t1, t2 = sT[0], sT[1], sT[2]
        a(f"s_mov_b32 {t0}, {k0}")
        lab = a.newlabel("L_dma"); end = a.newlabel("L_dmae")
        a(f"s_cmp_ge_u32 {t0}, {n}")
        a(f"s_cbranch_scc1 {end}")
        a.label(lab)
        a(f"s_mul_i32 {t1}, {t0}, {src_step}")
        a(f"s_add_u32 {t1}, {t1}, {src0}")
        a(f"s_lshl_b32 {t2}, {t0}, 10")
        a(f"s_add_u32 m0, {t2}, {lds0}")
        a(f"buffer_load_dwordx4 {voff}, {SRD_W}, {t1} offen lds {self.c.w_flags}")
        a(f"s_add_u32 {t0}, {t0}, {step}")
        a(f"s_cmp_lt_u32 {t0}, {n}")
        a(f"s_cbranch_scc1 {lab}")
        a.label(end)

    def dma_wq(self, lds0, k0, step):
        a = self.a
        t = vT[0]
        a(f"v_lshrrev_b32 v{t}, 1, {vLane}")
        a(f"v_lshlrev_b32 v{t}, 13, v{t}")
        a(f"v_and_b32 v{t+1}, 1, {vLane}")
        a(f"v_lshlrev_b32 v{t+1}, 4, v{t+1}")
        a(f"v_add_u32 v{t}, v{t}, v{t+1}")
        a(f"s_lshl_b32 {sT[3]}, {sS4cg}, 5")
        self.dma_loop(pWQ, 640 * 8192, f"v{t}", 20, sT[3], 32 * 8192, lds0, k0, step)

    def dma_wo(self):
        a = self.a
        a(f"v_lshrrev_b32 v{vT[2]}, 1, {vLane}")
        a(f"v_and_b32 v{vT[3]}, 1, {vLane}")
        a(f"v_lshlrev_b32 v{vT[3]}, 4, v{vT[3]}")
        a(f"v_mul_u32_u24 v{vT[4]}, 1280, v{vT[2]}")
        a(f"v_add_u32 v{vT[4]}, v{vT[4]}, v{vT[3]}")
        a(f"s_mul_i32 {sT[3]}, {sS1kg}, {1024*1280}")
        a(f"s_lshl_b32 {sT[4]}, {sS1cg}, 5")
        a(f"s_add_u32 {sT[3]}, {sT[3]}, {sT[4]}")
        self.dma_loop(pWO, 4096 * 1280, f"v{vT[4]}", 32, sT[3], 32 * 1280, WO_OFF, sWave, 3)

    def prologue(self):
        a = self.a; c = self.c
        a(f"s_cmp_ge_u32 {sW}, 256")
        a("s_cbranch_scc1 L_end")
        a("s_load_dwordx8 s[40:47], s[0:1], 0")
        a("s_load_dwordx4 s[48:51], s[0:1], 32")
        a("s_load_dwordx8 s[52:59], s[0:1], 48")
        a("s_load_dwordx2 s[60:61], s[0:1], 80")
        a("v_lshrrev_b32 v1, 6, v0")
        a(f"v_readfirstlane_b32 {sWave}, v1")
        a("v_and_b32 v0, 63, v0")
        t = vT
        a(f"v_and_b32 v{t[0]}, 7, {vLane}")
        a(f"v_lshlrev_b32 {vOffK}, 10, v{t[0]}")
        a(f"v_lshrrev_b32 v{t[0]}, 3, {vLane}")
        a(f"v_and_b32 v{t[0]}, 1, v{t[0]}")
        a(f"v_lshlrev_b32 v{t[0]}, 6, v{t[0]}")
        a(f"v_add_u32 {vOffK}, {vOffK}, v{t[0]}")
        a(f"v_lshrrev_b32 v{t[0]}, 4, {vLane}")
        a(f"v_lshlrev_b32 v{t[0]}, 4, v{t[0]}")
        a(f"v_add_u32 {vOffK}, {vOffK}, v{t[0]}")
        a(f"v_lshlrev_b32 {vOffV}, 4, {vLane}")
        a(f"v_add_u32 {vOffV2}, 4096, {vOffV}")
        a(f"v_and_b32 v{t[0]}, 15, {vLane}")
        a(f"v_and_b32 v{t[1]}, 1, {vLane}")
        a(f"v_mov_b32 v{t[2]}, 0xffff")
        a(f"v_mov_b32 v{t[3]}, 0xffff0000")
        a(f"v_cmp_eq_u32 vcc, 1, v{t[1]}")
        a(f"v_cndmask_b32 v{t[2]}, v{t[2]}, v{t[3]}, vcc")
        a(f"v_lshrrev_b32 v{t[0]}, 1, v{t[0]}")
        for r in range(4):
            a(f"v_cmp_eq_u32 vcc, {r}, v{t[0]}")
            a(f"v_cndmask_b32 v{vM[r]}, 0, v{t[2]}, vcc")
        a("s_waitcnt lgkmcnt(0)")
        a(f"s_lshl_b32 {sT[0]}, {sW}, 2")
        a(f"s_add_u32 {sT[0]}, {sT[0]}, {sWave}")
        a(f"s_lshl_b32 {sT[1]}, {sT[0]}, 17")
        for srd, p in ((8, pK), (12, pV)):
            a(f"s_add_u32 s{srd}, s{p[0]}, {sT[1]}")
            a(f"s_addc_u32 s{srd+1}, s{p[1]}, 0")
            a(f"s_mov_b32 s{srd+2}, 0x20000")
            a(f"s_mov_b32 s{srd+3}, 0x20000")
        self.srd(SRD_E, pWS, E_SIZE)
        if c.debug:
            a(f"s_add_u32 s92, s{pWS[0]}, {DBG_OFF}")
            a(f"s_addc_u32 s93, s{pWS[1]}, 0")
            a(f"s_mov_b32 s94, {1024*64*256}")
            a("s_mov_b32 s95, 0x20000")
        a(f"s_mul_i32 {sT[1]}, {sT[0]}, {c.rotmul}")
        a(f"s_lshr_b32 {sT[2]}, {sT[0]}, 4")
        a(f"s_add_u32 {sT[1]}, {sT[1]}, {sT[2]}")
        for hb in range(16):
            a(f"s_add_u32 {sT[2]}, {sT[1]}, {hb}")
            a(f"s_and_b32 {sT[2]}, {sT[2]}, 15")
            a(f"s_lshl_b32 {sOff(hb)}, {sT[2]}, 13")
        a(f"s_and_b32 {sX}, {sW}, 7")
        a(f"s_lshr_b32 {sY}, {sW}, 3")
        a(f"s_mov_b32 {sRole}, 0")
        a(f"s_and_b32 {sS1kg}, {sX}, 3")
        a(f"s_lshr_b32 {sT[0]}, {sX}, 2")
        a(f"s_mul_i32 {sT[0]}, {sT[0]}, 5")
        a(f"s_lshr_b32 {sT[1]}, {sY}, 2")
        a(f"s_add_u32 {sT[0]}, {sT[0]}, {sT[1]}")
        a(f"s_lshl_b32 {sT[0]}, {sT[0]}, 2")
        a(f"s_and_b32 {sT[1]}, {sY}, 3")
        a(f"s_add_u32 {sS1cg}, {sT[0]}, {sT[1]}")
        a(f"s_cmp_lt_u32 {sY}, 20")
        a(f"s_cselect_b32 {sRole}, 1, 0")
        a(f"s_mul_i32 {sS2j}, {sX}, 14")
        a(f"s_add_u32 {sS2j}, {sS2j}, {sY}")
        a(f"s_cmp_lt_u32 {sS2j}, 108")
        a(f"s_cselect_b32 {sT[0]}, 2, 0")
        a(f"s_cmp_lt_u32 {sY}, 14")
        a(f"s_cselect_b32 {sT[0]}, {sT[0]}, 0")
        a(f"s_or_b32 {sRole}, {sRole}, {sT[0]}")
        a(f"s_mul_i32 {sS3j}, {sX}, 10")
        a(f"s_add_u32 {sS3j}, {sS3j}, {sY}")
        a(f"s_sub_u32 {sS3j}, {sS3j}, 20")
        a(f"s_sub_u32 {sT[0]}, {sY}, 20")
        a(f"s_cmp_lt_u32 {sT[0]}, 10")
        a(f"s_cselect_b32 {sT[0]}, 4, 0")
        a(f"s_or_b32 {sRole}, {sRole}, {sT[0]}")
        a(f"s_lshr_b32 {sT[0]}, {sY}, 2")
        a(f"s_lshl_b32 {sT[0]}, {sT[0]}, 3")
        a(f"s_add_u32 {sT[0]}, {sT[0]}, {sX}")
        a(f"s_lshl_b32 {sT[0]}, {sT[0]}, 2")
        a(f"s_and_b32 {sT[1]}, {sY}, 3")
        a(f"s_add_u32 {sS4cg}, {sT[0]}, {sT[1]}")
        a(f"s_mov_b32 {sPhase}, 0")
        a(f"s_mov_b32 {sLay}, 0")
        a(f"s_cmp_eq_u32 {sWave}, 3")
        a("s_cbranch_scc1 L_w3_start")
        t = vT[0]
        a(f"v_lshrrev_b32 v{vT[2]}, 1, {vLane}")
        a(f"v_and_b32 v{vT[3]}, 1, {vLane}")
        a(f"v_lshlrev_b32 v{vT[3]}, 4, v{vT[3]}")
        a(f"s_bitcmp1_b32 {sRole}, 0")
        a("s_cbranch_scc0 L_no_s1w")
        self.dma_wo()
        a(f"s_bitcmp1_b32 {sRole}, 1")
        a("s_cbranch_scc0 L_wdone")
        a(f"v_mul_u32_u24 v{vT[4]}, 3456, v{vT[2]}")
        a(f"v_add_u32 v{vT[4]}, v{vT[4]}, v{vT[3]}")
        a(f"s_lshl_b32 {sT[3]}, {sS2j}, 5")
        self.dma_loop(pW1, 640 * 3456, f"v{vT[4]}", 20, sT[3], 32 * 3456, W1_OFF, sWave, 3)
        a("s_branch L_wdone")
        a.label("L_no_s1w")
        self.dma_wq(WQ_OFF, sWave, 3)
        a(f"s_bitcmp1_b32 {sRole}, 2")
        a("s_cbranch_scc0 L_wdone")
        a(f"v_mul_u32_u24 v{vT[4]}, 1280, {vLane}")
        a(f"s_lshl_b32 {sT[3]}, {sS3j}, 4")
        self.dma_loop(pW2, 1728 * 1280, f"v{vT[4]}", 27, sT[3], 64 * 1280, W2_OFF, sWave, 3)
        a.label("L_wdone")
        a("s_branch L_issue1")
        a.label("L_w3_start")
        if c.w3_pre:
            self.issue_first(0, c.w3_pre)
        for k in range(4): a(f"v_mov_b32 v{vQ+k}, -1")
        a(f"s_lshl_b32 {sT[0]}, {sW}, 11")
        a(f"buffer_store_dwordx4 v[{vQ}:{vQ+3}], {vOffV}, {SRD_E}, {sT[0]} offen sc1")
        a(f"buffer_store_dwordx4 v[{vQ}:{vQ+3}], {vOffV}, {SRD_E}, {sT[0]} offen offset:1024 sc1")
        self.srd(SRD_W, pX, 2560)
        self.ln_lds_addr(vT[2])
        for i in range(3):
            a(f"buffer_load_dwordx4 v[{vS+4*i}:{vS+4*i+3}], v{vT[2]}, {SRD_W}, 0 offen offset:{512*i}")
        self.dma_wq(WQ_TMP, 0, 1)
        a("s_waitcnt vmcnt(0)")
        a("s_mov_b64 exec, 1")
        a(f"v_mov_b32 v{vT[0]}, 0")
        a(f"v_mov_b32 v{vT[1]}, 1")
        a(f"global_atomic_add v{vT[0]}, v{vT[1]}, s[{pDBG[0]}:{pDBG[1]}] sc1")
        a("s_mov_b64 exec, -1")
        a(f"s_mov_b32 {sWB}, {WQ_TMP}")
        a("s_branch L_s4_have_x")

    def ln_lds_addr(self, t):
        a = self.a
        a(f"v_and_b32 v{t}, 1, {vLane}")
        a(f"v_mul_u32_u24 v{t}, 1280, v{t}")
        a(f"v_lshrrev_b32 v{t+1}, 1, {vLane}")
        a(f"v_lshlrev_b32 v{t+1}, 4, v{t+1}")
        a(f"v_add_u32 v{t}, v{t}, v{t+1}")

    def ln_gemv(self):
        a = self.a
        XI = 16; F = 28
        t = vT
        a("s_mov_b64 exec, 0xffffffff00000000")
        for k in range(4): a(f"v_mov_b32 v{XI+8+k}, 0")
        a("s_mov_b64 exec, -1")
        for k in range(12):
            a(f"v_lshlrev_b32 v{F+2*k}, 16, v{XI+k}")
            a(f"v_and_b32 v{F+2*k+1}, 0xffff0000, v{XI+k}")
        A0 = 8
        a(f"v_pk_add_f32 v[{A0}:{A0+1}], v[{F}:{F+1}], v[{F+2}:{F+3}]")
        a(f"v_pk_add_f32 v[{A0+2}:{A0+3}], v[{F+4}:{F+5}], v[{F+6}:{F+7}]")
        for k in range(4, 12, 2):
            a(f"v_pk_add_f32 v[{A0}:{A0+1}], v[{A0}:{A0+1}], v[{F+2*k}:{F+2*k+1}]")
            a(f"v_pk_add_f32 v[{A0+2}:{A0+3}], v[{A0+2}:{A0+3}], v[{F+2*k+2}:{F+2*k+3}]")
        a(f"v_pk_add_f32 v[{A0}:{A0+1}], v[{A0}:{A0+1}], v[{A0+2}:{A0+3}]")
        a(f"v_add_f32 v{t[0]}, v{A0}, v{A0+1}")
        self.red_parity(t[0], t[1])
        a(f"v_mul_f32 v{t[0]}, 0x3acccccd, v{t[0]}")
        a(f"v_sub_f32 v{A0+4}, 0, v{t[0]}")
        a(f"v_sub_f32 v{A0+5}, 0, v{t[0]}")
        a(f"v_mov_b32 v{A0}, 0"); a(f"v_mov_b32 v{A0+1}, 0")
        a(f"v_mov_b32 v{A0+2}, 0"); a(f"v_mov_b32 v{A0+3}, 0")
        for k in range(12):
            if k == 8: a("s_mov_b64 exec, 0xffffffff")
            d = A0 + 6
            acc = A0 + 2 * (k & 1)
            tmp = t[2 + 2 * (k & 1)]
            assert tmp % 2 == 0
            a(f"v_pk_add_f32 v[{tmp}:{tmp+1}], v[{F+2*k}:{F+2*k+1}], v[{A0+4}:{A0+5}]")
            a(f"v_pk_fma_f32 v[{acc}:{acc+1}], v[{tmp}:{tmp+1}], v[{tmp}:{tmp+1}], v[{acc}:{acc+1}]")
        a("s_mov_b64 exec, -1")
        a(f"v_pk_add_f32 v[{A0}:{A0+1}], v[{A0}:{A0+1}], v[{A0+2}:{A0+3}]")
        a(f"v_add_f32 v{t[1]}, v{A0}, v{A0+1}")
        self.red_parity(t[1], t[2])
        a(f"v_mul_f32 v{t[1]}, 0x3acccccd, v{t[1]}")
        self.bf16r(t[1], t[1])
        a(f"v_add_f32 v{t[1]}, 0x3727c5ac, v{t[1]}")
        self.bf16r(t[1], t[1])
        a(f"v_sqrt_f32 v{t[1]}, v{t[1]}")
        self.bf16r(t[1], t[1])
        a(f"v_rcp_f32 v{A0}, v{t[1]}")
        self.bf16r(t[0], t[0])
        a(f"v_mov_b32 v{A0+1}, v{A0}")
        a(f"v_sub_f32 v{A0+4}, 0, v{t[0]}")
        a(f"v_sub_f32 v{A0+5}, 0, v{t[0]}")
        for k in range(12):
            f = F + 2 * k
            a(f"v_pk_add_f32 v[{f}:{f+1}], v[{f}:{f+1}], v[{A0+4}:{A0+5}]")
        for k in range(12):
            f = F + 2 * k
            a(f"v_cvt_pk_bf16_f32 v{XI+k}, v{f}, v{f+1}")
        for k in range(12):
            f = F + 2 * k
            a(f"v_lshlrev_b32 v{f}, 16, v{XI+k}")
            a(f"v_and_b32 v{f+1}, 0xffff0000, v{XI+k}")
        for k in range(12):
            f = F + 2 * k
            a(f"v_pk_mul_f32 v[{f}:{f+1}], v[{f}:{f+1}], v[{A0}:{A0+1}]")
        for k in range(12):
            f = F + 2 * k
            a(f"v_cvt_pk_bf16_f32 v{XI+k}, v{f}, v{f+1}")
        self.ln_lds_addr(t[2])
        a(f"ds_write_b128 v{t[2]}, v[{XI}:{XI+3}] offset:{LNB}")
        a(f"ds_write_b128 v{t[2]}, v[{XI+4}:{XI+7}] offset:{LNB+512}")
        a("s_mov_b64 exec, 0xffffffff")
        a(f"ds_write_b128 v{t[2]}, v[{XI+8}:{XI+11}] offset:{LNB+1024}")
        a("s_mov_b64 exec, -1")
        self.dbg(list(range(XI, XI + 12)), 40)
        vA = t[2]; vB = t[3]
        self.gemv_addr(vA, vB, 1280, 32)
        a(f"v_add_u32 v{vB}, {sWB}, v{vB}")
        a("s_waitcnt lgkmcnt(0)")
        self.gemv(vA, LNB, 64, vB, 0, 1024, 128, 20, 28, slots=[8, 16, 32, 40])

    def gemv_addr(self, vA, vB, bstride, rowbytes):
        a = self.a; t = vT
        a(f"v_lshrrev_b32 v{vA}, 2, {vLane}")
        a(f"v_and_b32 v{vA}, 1, v{vA}")
        a(f"v_mul_u32_u24 v{vA}, {bstride}, v{vA}")
        a(f"v_lshrrev_b32 v{t[8]}, 4, {vLane}")
        a(f"v_lshlrev_b32 v{t[9]}, 4, v{t[8]}")
        a(f"v_add_u32 v{vA}, v{vA}, v{t[9]}")
        a(f"v_lshlrev_b32 v{vB}, 3, v{t[8]}")
        a(f"v_bfe_u32 v{t[9]}, {vLane}, 2, 2")
        a(f"v_add_u32 v{vB}, v{vB}, v{t[9]}")
        a(f"v_mul_u32_u24 v{vB}, {rowbytes}, v{vB}")
        a(f"v_and_b32 v{t[9]}, 3, {vLane}")
        a(f"v_lshlrev_b32 v{t[9]}, 3, v{t[9]}")
        a(f"v_add_u32 v{vB}, v{vB}, v{t[9]}")

    def gemv(self, vA, aoff, astep, vB, boff, bstep, b2, n, acc, depth=4, R0=32, slots=None):
        a = self.a
        if slots is None: slots = [R0 + 8 * k for k in range(depth)]
        depth = len(slots)
        def rd(s):
            r = slots[s % depth]
            a(f"ds_read_b128 v[{r}:{r+3}], v{vA} offset:{aoff + astep * s}")
            a(f"ds_read_b64_tr_b16 v[{r+4}:{r+5}], v{vB} offset:{boff + bstep * s}")
            a(f"ds_read_b64_tr_b16 v[{r+6}:{r+7}], v{vB} offset:{boff + bstep * s + b2}")
        for s in range(min(depth, n)): rd(s)
        for s in range(n):
            rem = min(n, s + depth) - (s + 1)
            a(f"s_waitcnt lgkmcnt({3 * rem})")
            r = slots[s % depth]
            cin = "0" if s == 0 else f"v[{acc}:{acc+3}]"
            a(f"v_mfma_f32_16x16x32_bf16 v[{acc}:{acc+3}], v[{r}:{r+3}], v[{r+4}:{r+7}], {cin}")
            if s + depth < n: rd(s + depth)

    def red_parity(self, v, t):
        a = self.a
        for ctl in ("quad_perm:[2,3,0,1]", "row_ror:4", "row_ror:8"):
            a(f"v_add_f32_dpp v{v}, v{v}, v{v} {ctl} row_mask:0xf bank_mask:0xf")
        self.red_rows(v, t, "v_add_f32")

    def pack_pairs(self, dst, src, t):
        a = self.a
        a(f"v_mov_b32_dpp v{t}, v{src} quad_perm:[1,0,3,2] row_mask:0xf bank_mask:0xf")
        a(f"v_cvt_pk_bf16_f32 v{dst}, v{src}, v{t}")

    def s4(self):
        a = self.a; c = self.c; t = vT
        a.label("L_s4")
        a(f"v_lshrrev_b32 v{t[0]}, 1, {vLane}")
        a(f"v_lshlrev_b32 v{t[0]}, 7, v{t[0]}")
        a(f"v_and_b32 v{t[1]}, 1, {vLane}")
        a(f"v_lshlrev_b32 v{t[1]}, 4, v{t[1]}")
        a(f"v_add_u32 v{t[0]}, v{t[0]}, v{t[1]}")
        a(f"s_mov_b32 {sCnt}, 0")
        a(f"v_and_b32 v{t[1]}, 31, {vLane}")
        a(f"v_lshrrev_b32 v{t[2]}, 1, v{t[1]}")
        a(f"v_lshlrev_b32 v{t[2]}, 7, v{t[2]}")
        a(f"v_and_b32 v{t[1]}, 1, {vLane}")
        a(f"v_lshlrev_b32 v{t[1]}, 4, v{t[1]}")
        a(f"v_add_u32 v{t[1]}, v{t[2]}, v{t[1]}")
        a(f"s_mov_b32 {sT[0]}, {E4}")
        a(f"s_mov_b32 {sT[1]}, {E4 + 4096}")
        a(f"s_mov_b32 {sT[2]}, {E4 + 8192}")
        a.label("L_s4_poll")
        a(f"buffer_load_dwordx4 v[16:19], v{t[0]}, {SRD_E}, {sT[0]} offen sc1")
        a(f"buffer_load_dwordx4 v[20:23], v{t[0]}, {SRD_E}, {sT[1]} offen sc1")
        a(f"buffer_load_dwordx4 v[24:27], v{t[1]}, {SRD_E}, {sT[2]} offen sc1")
        a("s_waitcnt vmcnt(0)")
        self.sentinel_check(range(16, 28), t[3], "L_s4_poll")
        a(f"s_mov_b32 {sWB}, {WQ_OFF}")
        a.label("L_s4_have_x")
        self.ln_lds_addr(t[2])
        a(f"ds_write_b128 v{t[2]}, v[16:19] offset:{XRES}")
        a(f"ds_write_b128 v{t[2]}, v[20:23] offset:{XRES+512}")
        a("s_mov_b64 exec, 0xffffffff")
        a(f"ds_write_b128 v{t[2]}, v[24:27] offset:{XRES+1024}")
        a("s_mov_b64 exec, -1")
        a(f"s_mov_b32 {sCaller}, 0")
        a.label("L_lngemv")
        self.ln_gemv()
        a(f"s_cmp_eq_u32 {sCaller}, 1")
        a("s_cbranch_scc1 L_s2_epi")
        a(f"s_cmp_eq_u32 {sPhase}, 0")
        a("s_cbranch_scc1 L_s4_nobar")
        a("s_barrier")
        a.label("L_s4_nobar")
        self.dbg([28], 52)
        self.pack_pairs(t[0], 28, t[1])
        a(f"s_cmp_lg_u32 {sPhase}, 0")
        a("s_cbranch_scc1 L_s4_pub")
        a(f"s_mov_b32 {sCnt}, 0")
        a(f"v_mov_b32 v{t[2]}, 0")
        a.label("L_cnt_poll")
        a(f"global_load_dword v{t[3]}, v{t[2]}, s[{pDBG[0]}:{pDBG[1]}] sc1")
        a("s_waitcnt vmcnt(0)")
        a(f"v_cmp_gt_u32 vcc, 256, v{t[3]}")
        a(f"s_add_u32 {sCnt}, {sCnt}, 1")
        a(f"s_cmp_gt_u32 {sCnt}, {c.spin}")
        a("s_cbranch_scc1 L_s4_pub")
        a("s_cbranch_vccnz L_cnt_poll")
        a.label("L_s4_pub")
        a(f"s_mul_i32 {sT[0]}, {sPhase}, {E5_L}")
        a(f"s_add_u32 {sT[0]}, {sT[0]}, {E5}")
        a(f"s_lshl_b32 {sT[1]}, {sS4cg}, 7")
        a(f"s_add_u32 {sT[1]}, {sT[1]}, {sT[0]}")
        a(f"v_lshrrev_b32 v{t[2]}, 4, {vLane}")
        a(f"v_lshlrev_b32 v{t[2]}, 5, v{t[2]}")
        a(f"v_and_b32 v{t[3]}, 15, {vLane}")
        a(f"v_lshlrev_b32 v{t[3]}, 1, v{t[3]}")
        a(f"v_add_u32 v{t[2]}, v{t[2]}, v{t[3]}")
        a("s_mov_b64 exec, 0x55555555")
        a(f"buffer_store_dword v{t[0]}, v{t[2]}, {SRD_E}, {sT[1]} offen sc1")
        a("s_mov_b64 exec, -1")
        a(f"s_lshr_b32 {sT[1]}, {sW}, 2")
        a(f"s_and_b32 {sT[1]}, {sT[1]}, 31")
        a(f"s_lshl_b32 {sT[1]}, {sT[1]}, 10")
        a(f"s_add_u32 {sT[0]}, {sT[0]}, {sT[1]}")
        a(f"s_lshr_b32 {sT[1]}, {sW}, 7")
        a(f"s_lshl_b32 {sT[1]}, {sT[1]}, 5")
        a(f"s_add_u32 {sT[0]}, {sT[0]}, {sT[1]}")
        a(f"v_and_b32 v{t[3]}, 15, {vLane}")
        a(f"v_lshrrev_b32 v{t[2]}, 1, v{t[3]}")
        a(f"v_lshlrev_b32 v{t[2]}, 7, v{t[2]}")
        a(f"v_and_b32 v{t[4]}, 1, {vLane}")
        a(f"v_lshlrev_b32 v{t[4]}, 4, v{t[4]}")
        a(f"v_add_u32 v{t[2]}, v{t[2]}, v{t[4]}")
        a(f"s_mov_b32 {sCnt}, 0")
        a.label("L_q_poll")
        a(f"buffer_load_dwordx4 v[16:19], v{t[2]}, {SRD_E}, {sT[0]} offen sc1")
        a("s_waitcnt vmcnt(0)")
        self.sentinel_check(range(16, 20), t[4], "L_q_poll")
        a(f"v_lshlrev_b32 v{t[3]}, 4, v{t[3]}")
        a(f"ds_write_b128 v{t[3]}, v[16:19] offset:{QB}")
        a("s_waitcnt lgkmcnt(0)")
        a(f"s_cmp_eq_u32 {sPhase}, 0")
        a("s_cbranch_scc0 L_pass2")
        self.issue_first(c.w3_pre, None)
        a("s_branch L_pass1")

    def emit_load(self, ld):
        a = self.a; c = self.c
        kind, r, idx, cell = ld["kind"], ld["r"], ld["i"], ld["cell"]
        if kind == "K":
            t, hf = idx
            hb = 2 * r + (t & 1)
            imm = (t >> 1) * 256 + hf * 128
            voff = vOffK; srd = SRD_K
        else:
            n = idx
            hb = 2 * r + (n >> 3)
            q = n & 7
            imm = (q & 3) * 1024
            voff = vOffV if q < 4 else vOffV2
            srd = SRD_V
        if cell.kind == "l":
            a(f"s_add_u32 m0, {sT[15]}, {cell.base * 1024 - imm + CELLS}")
            a(f"buffer_load_dwordx4 {voff}, {srd}, {sOff(hb)} offen offset:{imm} lds {c.kv_flags}")
        else:
            a(f"buffer_load_dwordx4 {cell.reg()}, {voff}, {srd}, {sOff(hb)} offen offset:{imm} {c.kv_flags}")

    def plan(self):
        c = self.c
        nR = c.nR
        Rr = list(range(nR)); Nr = list(range(nR, 8))
        def kloads(rs):
            out = []
            for r in rs:
                for half in range(2):
                    for g in range(4):
                        for hf in range(2):
                            out.append(dict(kind="K", r=r, i=(2 * g + half, hf), cell=None))
            return out
        def vloads(rs):
            return [dict(kind="V", r=r, i=n, cell=None) for r in rs for n in range(16)]
        regcells = [Cell("a", b) for b in range(0, 256, 4)] + [Cell("v", b) for b in range(64, 256, 4)]
        ldscells = [Cell("l", k) for k in range(c.nLds)]
        KR = kloads(Rr); KN = kloads(Nr)
        nL = min(c.nLds, len(KR)) // 4 * 4
        nKRreg = len(KR) - nL
        assert nKRreg <= len(regcells)
        fixed = regcells[:nKRreg]; ring = regcells[nKRreg:]
        for k, ld in enumerate(KR):
            ld["cell"] = fixed[k] if k < nKRreg else ldscells[k - nKRreg]
            ld["keep"] = True
        VRall = vloads(Rr); VN = vloads(Nr)
        nVR = min(len(VRall), len(ring)) if nR > 0 else 0
        VR = VRall[:nVR]; Vrest = VRall[nVR:]
        for ld in VR: ld["keep"] = True
        self.P = dict(KR=KR, KN=KN, VR=VR, Vrest=Vrest, VN=VN, ring=ring, fixed=fixed)
        self.p1_issue = KN + KR + VN + Vrest + VR

    def issue_first(self, lo, hi):
        n = self.p1_first
        hi = n if hi is None else min(hi, n)
        for ld in self.p1_issue[lo:hi]:
            self.emit_load(ld)

    def assign_first(self):
        c = self.c
        self.free = list(self.P["ring"])
        n = 0
        for ld in self.p1_issue:
            if n >= c.window: break
            if ld["cell"] is None:
                if not self.free: break
                ld["cell"] = self.free.pop(0)
            if ld["cell"].kind == "l": break
            n += 1
        self.p1_first = n

    def qk_step(self, lds4, r):
        a = self.a
        D0 = vD; D1 = vD + 4
        regs = []
        if lds4[0]["cell"].kind == "l":
            for k, ld in enumerate(lds4):
                a(f"ds_read_b128 v[{vL+4*k}:{vL+4*k+3}], {vOffV} offset:{0}".replace("offset:0", f"offset:{(ld['cell'].base*1024) % 65536}") if False else
                  f"ds_read_b128 v[{vL+4*k}:{vL+4*k+3}], v{vT[8]} offset:{ld['cell'].base*1024}")
                regs.append(f"v[{vL+4*k}:{vL+4*k+3}]")
            a("s_waitcnt lgkmcnt(0)")
        else:
            regs = [ld["cell"].reg() for ld in lds4]
        q0 = f"v[{vQ}:{vQ+3}]"; q1 = f"v[{vQ+4}:{vQ+7}]"
        a(f"v_mfma_f32_16x16x32_bf16 v[{D0}:{D0+3}], {q0}, {regs[0]}, 0")
        a(f"v_mfma_f32_16x16x32_bf16 v[{D1}:{D1+3}], {q0}, {regs[2]}, 0")
        a(f"v_mfma_f32_16x16x32_bf16 v[{D0}:{D0+3}], {q1}, {regs[1]}, v[{D0}:{D0+3}]")
        a(f"v_mfma_f32_16x16x32_bf16 v[{D1}:{D1+3}], {q1}, {regs[3]}, v[{D1}:{D1+3}]")
        def fin():
            for D, ld in ((D0, lds4[0]), (D1, lds4[2])):
                t = ld["i"][0]
                g = t >> 1; half = t & 1
                if half == 0:
                    a(f"v_add_f32_dpp v{vS+r}, v{D+1}, v{D} row_ror:8 row_mask:{1<<g:#x} bank_mask:0x3")
                else:
                    a(f"v_add_f32_dpp v{vS+r}, v{D}, v{D+1} row_ror:8 row_mask:{1<<g:#x} bank_mask:0xc")
        return fin

    def softmax(self, rs, first, rescale):
        a = self.a; t = vT
        rs = list(rs)
        for k in range(0, len(rs), 2):
            r0 = vS + rs[k]
            r1 = vS + rs[k + 1] if k + 1 < len(rs) else r0
            a(f"v_cvt_pk_bf16_f32 v{t[0]}, v{r0}, v{r1}")
            a(f"v_lshlrev_b32 v{r0}, 16, v{t[0]}")
            if r1 != r0: a(f"v_and_b32 v{r1}, 0xffff0000, v{t[0]}")
            a(f"v_mul_f32 v{r0}, {SCALE:#x}, v{r0}")
            if r1 != r0: a(f"v_mul_f32 v{r1}, {SCALE:#x}, v{r1}")
            a(f"v_cvt_pk_bf16_f32 v{t[0]}, v{r0}, v{r1}")
            a(f"v_lshlrev_b32 v{r0}, 16, v{t[0]}")
            if r1 != r0: a(f"v_and_b32 v{r1}, 0xffff0000, v{t[0]}")
        m = t[1]
        a(f"v_mov_b32 v{m}, v{vS+rs[0]}")
        for r in rs[1:]:
            a(f"v_max_f32 v{m}, v{m}, v{vS+r}")
        if not first:
            a(f"v_max_f32 v{m}, v{m}, v{vMax}")
        self.red_all(m, t[2], "v_max_f32")
        if rescale:
            a(f"v_sub_f32 v{t[2]}, v{vMax}, v{m}")
            a(f"v_mul_f32 v{t[2]}, {LOG2E:#x}, v{t[2]}")
            a(f"v_exp_f32 v{t[2]}, v{t[2]}")
            a(f"v_mul_f32 v{vLsum}, v{vLsum}, v{t[2]}")
            for k in range(4): a(f"v_mul_f32 v{vO+k}, v{vO+k}, v{t[2]}")
        a(f"v_mov_b32 v{vMax}, v{m}")
        if first: a(f"v_mov_b32 v{vLsum}, 0")
        for r in rs:
            a(f"v_sub_f32 v{vS+r}, v{vS+r}, v{m}")
            a(f"v_mul_f32 v{vS+r}, {LOG2E:#x}, v{vS+r}")
            a(f"v_exp_f32 v{vS+r}, v{vS+r}")
        for r in rs:
            a(f"v_add_f32 v{vLsum}, v{vLsum}, v{vS+r}")
            a(f"v_cvt_pk_bf16_f32 v{vS+r}, v{vS+r}, v{vS+r}")

    def pv_afrag(self, ld, buf):
        a = self.a
        A = vD + 4 * buf
        for k in range(4):
            a(f"v_and_b32_dpp v{A+k}, v{vS+ld['r']}, v{vM[k]} row_newbcast:{ld['i']} row_mask:0xf bank_mask:0xf")

    def run_pass(self, pno):
        a = self.a; c = self.c; P = self.P
        a.label(f"L_pass{pno}")
        a("s_barrier")
        t = vT
        a(f"v_and_b32 v{t[0]}, 1, {vLane}")
        a(f"v_lshlrev_b32 v{t[0]}, 6, v{t[0]}")
        a(f"v_lshrrev_b32 v{t[1]}, 4, {vLane}")
        a(f"v_lshlrev_b32 v{t[1]}, 4, v{t[1]}")
        a(f"v_add_u32 v{t[0]}, v{t[0]}, v{t[1]}")
        a(f"ds_read_b128 v[{vQ}:{vQ+3}], v{t[0]} offset:{QB}")
        a(f"ds_read_b128 v[{vQ+4}:{vQ+7}], v{t[0]} offset:{QB+128}")
        if c.nLds:
            a(f"s_mul_i32 {sT[15]}, {sWave}, {c.nLds*1024}")
            a(f"v_add_u32 v{t[8]}, {sT[15]}, {vOffV}")
            a(f"v_add_u32 v{t[8]}, {CELLS}, v{t[8]}")
        a("s_waitcnt lgkmcnt(0)")
        if pno == 1:
            issue = self.p1_issue; issued = self.p1_first
            segs = [("K", P["KN"] + P["KR"]), ("SM", list(range(8)), True, False), ("V", P["VN"] + P["Vrest"] + P["VR"])]
            if c.nR == 0: segs = [("K", P["KN"]), ("SM", list(range(8)), True, False), ("V", P["VN"])]
            done = set()
        else:
            import copy
            def fresh(l): return [dict(kind=x["kind"], r=x["r"], i=x["i"], cell=None) for x in l]
            KN = fresh(P["KN"]); VN = fresh(P["VN"]); Vrest = fresh(P["Vrest"])
            issue = Vrest + KN + VN; issued = 0
            held = set(id(l["cell"]) for l in P["KR"] + P["VR"])
            allreg = P["fixed"] + P["ring"]
            self.free = [x for x in allreg if id(x) not in held]
            nR = c.nR
            if nR == 0:
                segs = [("K", KN), ("SM", list(range(8)), True, False), ("V", VN)]
            else:
                segs = [("KR", P["KR"]), ("SM", list(range(nR)), True, False), ("VR", P["VR"]), ("V", Vrest),
                        ("K", KN), ("SM", list(range(nR, 8)), False, True), ("V", VN)]
        pos = {id(ld): k for k, ld in enumerate(issue)}
        st = dict(issued=issued, complete=0)
        def try_issue():
            while st["issued"] < len(issue) and st["issued"] - st["complete"] < c.window:
                ld = issue[st["issued"]]
                if ld["cell"] is None:
                    if not self.free: break
                    ld["cell"] = self.free.pop(0)
                self.emit_load(ld)
                st["issued"] += 1
        def wait_for(lds):
            ks = [pos[id(l)] for l in lds if id(l) in pos]
            if not ks: return
            k = max(ks)
            assert k < st["issued"], (pno, k, st["issued"])
            if k >= st["complete"]:
                a(f"s_waitcnt vmcnt({st['issued'] - 1 - k})")
                st["complete"] = k + 1
        def release(lds, keep_ok):
            for l in lds:
                if l["cell"].kind == "l": continue
                if keep_ok and l.get("keep"): continue
                self.free.append(l["cell"])
        try_issue()
        firstV = True
        for seg in segs:
            if seg[0] in ("K", "KR"):
                L = seg[1]
                for k in range(0, len(L), 4):
                    grp = L[k:k + 4]
                    wait_for(grp)
                    fin = self.qk_step(grp, grp[0]["r"])
                    release(grp, pno == 1)
                    try_issue()
                    fin()
            elif seg[0] == "SM":
                if pno == 1 or True:
                    self.dbg([vS + r for r in seg[1]], 0 + 8 * (pno - 1)) if seg[2] and len(seg[1]) == 8 else None
                self.softmax(seg[1], seg[2], seg[3])
                if seg[2]:
                    for k in range(4): a(f"v_mov_b32 v{vO+k}, 0")
            else:
                L = seg[1]
                if not L: continue
                self.pv_afrag(L[0], 0)
                for k, ld in enumerate(L):
                    if k + 1 < len(L): self.pv_afrag(L[k + 1], (k + 1) & 1)
                    wait_for([ld])
                    A = vD + 4 * (k & 1)
                    a(f"v_mfma_f32_16x16x32_bf16 v[{vO}:{vO+3}], v[{A}:{A+3}], {ld['cell'].reg()}, v[{vO}:{vO+3}]")
                    release([ld], pno == 1)
                    try_issue()
        assert st["issued"] == len(issue)
        self.red_all(vLsum, t[0], "v_add_f32")
        a(f"s_mul_i32 {sT[0]}, {sWave}, 544")
        a(f"v_and_b32 v{t[0]}, 15, {vLane}")
        a(f"v_lshlrev_b32 v{t[0]}, 5, v{t[0]}")
        a(f"v_lshrrev_b32 v{t[1]}, 4, {vLane}")
        a(f"v_lshlrev_b32 v{t[1]}, 4, v{t[1]}")
        a(f"v_add_u32 v{t[0]}, v{t[0]}, v{t[1]}")
        a(f"v_add_u32 v{t[0]}, {sT[0]}, v{t[0]}")
        a("s_mov_b64 exec, 0xffffffff")
        a(f"ds_write_b128 v{t[0]}, v[{vO}:{vO+3}] offset:{COMB}")
        a("s_mov_b64 exec, 1")
        a(f"v_mov_b32 v{t[2]}, v{vMax}")
        a(f"v_mov_b32 v{t[3]}, v{vLsum}")
        a(f"v_mov_b32 v{t[1]}, {sT[0]}")
        a(f"ds_write_b64 v{t[1]}, v[{t[2]}:{t[3]}] offset:{COMB+512}")
        a("s_mov_b64 exec, -1")
        a("s_waitcnt lgkmcnt(0)")
        a(f"s_mov_b32 {sPhase}, {pno}")
        a(f"s_mov_b32 {sLay}, {pno-1}")
        if pno == 1: a("s_branch L_chain")

    def chain(self):
        a = self.a; c = self.c; t = vT
        a.label("L_chain")
        a("s_barrier")
        a(f"s_cmp_lg_u32 {sWave}, 3")
        a("s_cbranch_scc1 L_comb_done")
        a(f"v_and_b32 v{t[0]}, 31, {vLane}")
        a(f"v_lshlrev_b32 v{t[0]}, 4, v{t[0]}")
        a(f"v_mov_b32 v{t[1]}, 0")
        for w in range(4):
            a(f"ds_read_b128 v[{8+4*w}:{11+4*w}], v{t[0]} offset:{COMB+544*w}")
            a(f"ds_read_b64 v[{24+2*w}:{25+2*w}], v{t[1]} offset:{COMB+544*w+512}")
        a("s_waitcnt lgkmcnt(0)")
        a(f"v_max_f32 v32, v24, v26")
        a(f"v_max3_f32 v32, v32, v28, v30")
        for w in range(4):
            a(f"v_sub_f32 v{24+2*w}, v{24+2*w}, v32")
            a(f"v_mul_f32 v{24+2*w}, {LOG2E:#x}, v{24+2*w}")
            a(f"v_exp_f32 v{24+2*w}, v{24+2*w}")
        a(f"v_mul_f32 v33, v24, v25")
        for w in range(1, 4): a(f"v_fmac_f32 v33, v{24+2*w}, v{25+2*w}")
        for k in range(4):
            a(f"v_mul_f32 v{36+k}, v24, v{8+k}")
            for w in range(1, 4): a(f"v_fmac_f32 v{36+k}, v{24+2*w}, v{8+4*w+k}")
        a("s_mov_b64 exec, 0x100000000")
        a("v_mov_b32 v36, v32"); a("v_mov_b32 v37, v33"); a("v_mov_b32 v38, v32"); a("v_mov_b32 v39, v33")
        a("s_mov_b64 exec, 0x1ffffffff")
        a(f"s_mul_i32 {sT[0]}, {sLay}, {E1_L}")
        a(f"s_mul_i32 {sT[1]}, {sW}, {E1_STRIDE}")
        a(f"s_add_u32 {sT[0]}, {sT[0]}, {sT[1]}")
        if E1: a(f"s_add_u32 {sT[0]}, {sT[0]}, {E1}")
        a(f"buffer_store_dwordx4 v[36:39], {vOffV}, {SRD_E}, {sT[0]} offen sc1")
        a("s_mov_b64 exec, -1")
        self.dbg([36, 37, 38, 39], 16)
        a.label("L_comb_done")
        a(f"s_bitcmp1_b32 {sRole}, 0")
        a("s_cbranch_scc0 L_no_s1")
        self.s1()
        a(f"s_bitcmp1_b32 {sRole}, 1")
        a("s_cbranch_scc0 L_no_s2")
        self.s2()
        a.label("L_no_s2")
        a(f"s_cmp_lg_u32 {sWave}, 3")
        a("s_cbranch_scc1 L_idle")
        a("s_branch L_after_s12")
        a.label("L_no_s1")
        a(f"s_cmp_lg_u32 {sWave}, 3")
        a("s_cbranch_scc1 L_idle")
        a(f"s_bitcmp1_b32 {sRole}, 2")
        a("s_cbranch_scc0 L_tail_w3")
        self.s3()
        a("s_branch L_tail_w3")
        a.label("L_after_s12")
        a(f"s_cmp_eq_u32 {sPhase}, 2")
        a("s_cbranch_scc1 L_end")
        self.dma_wq(WQ_OFF, 0, 1)
        a.label("L_tail_w3")
        a(f"s_cmp_eq_u32 {sPhase}, 2")
        a("s_cbranch_scc1 L_end")
        a("s_branch L_s4")
        a.label("L_idle")
        a(f"s_cmp_eq_u32 {sPhase}, 2")
        a("s_cbranch_scc1 L_end")
        a("s_barrier")
        a(f"s_bitcmp1_b32 {sRole}, 0")
        a("s_cbranch_scc0 L_pass2")
        self.dma_wo()
        a("s_branch L_pass2")

    def s1(self):
        a = self.a; c = self.c; t = vT
        a(f"s_lshl_b32 {sT[0]}, {sS1kg}, 3")
        a(f"s_lshl_b32 {sT[1]}, {sWave}, 1")
        a(f"s_add_u32 {sT[0]}, {sT[0]}, {sT[1]}")
        a(f"s_mul_i32 {sT[0]}, {sT[0]}, {4*E1_STRIDE}")
        a(f"s_mul_i32 {sT[1]}, {sLay}, {E1_L}")
        a(f"s_add_u32 {sT[0]}, {sT[0]}, {sT[1]}")
        if E1: a(f"s_add_u32 {sT[0]}, {sT[0]}, {E1}")
        a(f"v_and_b32 v{t[0]}, 3, {vLane}")
        a(f"v_bfe_u32 v{t[1]}, {vLane}, 2, 1")
        a(f"v_lshlrev_b32 v{t[1]}, 7, v{t[1]}")
        a(f"v_add_u32 v{t[0]}, v{t[0]}, v{t[1]}")
        a(f"v_bfe_u32 v{t[1]}, {vLane}, 3, 1")
        a(f"v_lshlrev_b32 v{t[1]}, 2, v{t[1]}")
        a(f"v_add_u32 v{t[0]}, v{t[0]}, v{t[1]}")
        a(f"v_mul_u32_u24 v{t[0]}, {E1_STRIDE}, v{t[0]}")
        a(f"s_mov_b32 {sCnt}, 0")
        a.label("L_s1_ml")
        a(f"buffer_load_dwordx2 v[8:9], v{t[0]}, {SRD_E}, {sT[0]} offen offset:512 sc1")
        a("s_waitcnt vmcnt(0)")
        self.sentinel_check([8, 9], t[1], "L_s1_ml")
        a(f"v_lshrrev_b32 v{t[0]}, 5, {vLane}")
        a(f"v_mul_u32_u24 v{t[0]}, {E1_STRIDE}, v{t[0]}")
        a(f"v_and_b32 v{t[1]}, 31, {vLane}")
        a(f"v_lshlrev_b32 v{t[1]}, 4, v{t[1]}")
        a(f"v_add_u32 v{t[0]}, v{t[0]}, v{t[1]}")
        for p in range(4):
            hh = p >> 1; b = p & 1
            a(f"s_add_u32 {sT[2+p]}, {sT[0]}, {(b*128 + hh*4) * E1_STRIDE}")
        a(f"s_mov_b32 {sCnt}, 0")
        a.label("L_s1_data")
        D0 = 16
        for p in range(4):
            for k in range(2):
                r = D0 + 8 * p + 4 * k
                a(f"buffer_load_dwordx4 v[{r}:{r+3}], v{t[0]}, {SRD_E}, {sT[2+p]} offen offset:{2*k*E1_STRIDE} sc1")
        a(f"v_max_f32_dpp v10, v8, v8 quad_perm:[1,0,3,2] row_mask:0xf bank_mask:0xf")
        a(f"v_max_f32_dpp v10, v10, v10 quad_perm:[2,3,0,1] row_mask:0xf bank_mask:0xf")
        a(f"v_sub_f32 v10, v8, v10")
        a(f"v_mul_f32 v10, {LOG2E:#x}, v10")
        a(f"v_exp_f32 v10, v10")
        a(f"v_mul_f32 v11, v10, v9")
        a(f"v_add_f32_dpp v11, v11, v11 quad_perm:[1,0,3,2] row_mask:0xf bank_mask:0xf")
        a(f"v_add_f32_dpp v11, v11, v11 quad_perm:[2,3,0,1] row_mask:0xf bank_mask:0xf")
        a(f"v_rcp_f32 v11, v11")
        a(f"v_mul_f32 v12, v10, v11")
        a(f"v_mov_b32 v13, v12")
        a(f"v_mov_b32_dpp v13, v12 quad_perm:[1,1,3,3] row_mask:0xc bank_mask:0xf")
        a("s_waitcnt vmcnt(0)")
        self.sentinel_check(range(D0, D0 + 32), t[1], "L_s1_data")
        for p in range(4):
            for e in range(4):
                r0 = D0 + 8 * p + e; r1 = r0 + 4
                a(f"v_mul_f32_dpp v{r0}, v13, v{r0} row_newbcast:{4*p} row_mask:0xf bank_mask:0xf")
                a(f"v_fmac_f32_dpp v{r0}, v13, v{r1} row_newbcast:{4*p+2} row_mask:0xf bank_mask:0xf")
        for hh in range(2):
            for e in range(4):
                ra = D0 + 8 * (2 * hh) + e; rb = D0 + 8 * (2 * hh + 1) + e
                a(f"v_permlane32_swap_b32 v{ra}, v{rb}")
                a(f"v_add_f32 v{ra}, v{ra}, v{rb}")
            ra = D0 + 16 * hh
            a(f"v_cvt_pk_bf16_f32 v{ra}, v{ra}, v{ra+1}")
            a(f"v_cvt_pk_bf16_f32 v{ra+1}, v{ra+2}, v{ra+3}")
        a(f"v_lshrrev_b32 v{t[0]}, 5, {vLane}")
        a(f"v_lshlrev_b32 v{t[0]}, 11, v{t[0]}")
        a(f"v_and_b32 v{t[1]}, 31, {vLane}")
        a(f"v_lshlrev_b32 v{t[1]}, 3, v{t[1]}")
        a(f"v_add_u32 v{t[0]}, v{t[0]}, v{t[1]}")
        a(f"s_lshl_b32 {sT[1]}, {sWave}, 9")
        a(f"v_add_u32 v{t[0]}, {sT[1]}, v{t[0]}")
        a(f"ds_write_b64 v{t[0]}, v[{D0}:{D0+1}] offset:{VEC_S1}")
        a(f"ds_write_b64 v{t[0]}, v[{D0+16}:{D0+17}] offset:{VEC_S1+256}")
        self.dbg([D0, D0 + 1, D0 + 16, D0 + 17], 20)
        vA = t[2]; vB = t[3]
        self.gemv_addr(vA, vB, 2048, 32)
        a(f"v_add_u32 v{vA}, {sT[1]}, v{vA}")
        a(f"s_lshl_b32 {sT[2]}, {sWave}, 13")
        a(f"v_add_u32 v{vB}, {sT[2]}, v{vB}")
        a("s_waitcnt lgkmcnt(0)")
        self.gemv(vA, VEC_S1, 64, vB, WO_OFF, 1024, 128, 8, 8, R0=16)
        a(f"s_lshl_b32 {sT[1]}, {sWave}, 7")
        a(f"v_lshlrev_b32 v{t[0]}, 2, {vLane}")
        a(f"v_add_u32 v{t[1]}, {sT[1]}, v{t[0]}")
        a("s_mov_b64 exec, 0xffffffff")
        a(f"ds_write_b32 v{t[1]}, v8 offset:{RED}")
        a("s_mov_b64 exec, -1")
        a("s_waitcnt lgkmcnt(0)")
        a("s_barrier")
        a(f"s_cmp_lg_u32 {sWave}, 3")
        a("s_cbranch_scc1 L_s1_done")
        for w in range(4):
            a(f"ds_read_b32 v{8+w}, v{t[0]} offset:{RED+128*w}")
        a("s_waitcnt lgkmcnt(0)")
        a("v_add_f32 v8, v8, v9"); a("v_add_f32 v10, v10, v11"); a("v_add_f32 v8, v8, v10")
        a(f"s_mul_i32 {sT[0]}, {sS1kg}, 40")
        a(f"s_add_u32 {sT[0]}, {sT[0]}, {sS1cg}")
        a(f"s_lshl_b32 {sT[0]}, {sT[0]}, 7")
        a(f"s_mul_i32 {sT[1]}, {sLay}, {E2_L}")
        a(f"s_add_u32 {sT[0]}, {sT[0]}, {sT[1]}")
        a(f"s_add_u32 {sT[0]}, {sT[0]}, {E2}")
        a("s_mov_b64 exec, 0xffffffff")
        a(f"buffer_store_dword v8, v{t[0]}, {SRD_E}, {sT[0]} offen sc1")
        a("s_mov_b64 exec, -1")
        self.dbg([8], 24)
        a.label("L_s1_done")

    def s2(self):
        a = self.a; c = self.c; t = vT
        a(f"s_mul_i32 {sT[0]}, {sWave}, 80")
        a(f"v_add_u32 v{t[0]}, {sT[0]}, {vLane}")
        a(f"v_and_b32 v{t[1]}, 15, {vLane}")
        a(f"v_add_u32 v{t[1]}, {sT[0]}, v{t[1]}")
        a(f"v_add_u32 v{t[1]}, 64, v{t[1]}")
        a(f"v_lshlrev_b32 v{t[2]}, 4, v{t[0]}")
        a(f"v_lshlrev_b32 v{t[3]}, 4, v{t[1]}")
        a(f"s_mul_i32 {sT[1]}, {sLay}, {E2_L}")
        a(f"s_add_u32 {sT[1]}, {sT[1]}, {E2}")
        for kg in range(4):
            a(f"s_add_u32 {sT[2+kg]}, {sT[1]}, {kg*5120}")
        a(f"s_mov_b32 {sCnt}, 0")
        a.label("L_s2_poll")
        for kg in range(4):
            a(f"buffer_load_dwordx4 v[{8+8*kg}:{11+8*kg}], v{t[2]}, {SRD_E}, {sT[2+kg]} offen sc1")
            a(f"buffer_load_dwordx4 v[{12+8*kg}:{15+8*kg}], v{t[3]}, {SRD_E}, {sT[2+kg]} offen sc1")
        for (q, d) in ((t[0], t[4]), (t[1], t[5])):
            a(f"v_bfe_u32 v{d}, v{q}, 2, 1")
            a(f"v_mul_u32_u24 v{d}, 1280, v{d}")
            a(f"v_lshrrev_b32 v{t[6]}, 3, v{q}")
            a(f"v_lshlrev_b32 v{t[6]}, 5, v{t[6]}")
            a(f"v_add_u32 v{d}, v{d}, v{t[6]}")
            a(f"v_and_b32 v{t[6]}, 3, v{q}")
            a(f"v_lshlrev_b32 v{t[6]}, 3, v{t[6]}")
            a(f"v_add_u32 v{d}, v{d}, v{t[6]}")
        a(f"ds_read_b64 v[40:41], v{t[4]} offset:{XRES}")
        a(f"ds_read_b64 v[42:43], v{t[5]} offset:{XRES}")
        a("s_waitcnt vmcnt(0) lgkmcnt(0)")
        self.sentinel_check(range(8, 40), t[6], "L_s2_poll")
        for e in range(8):
            a(f"v_add_f32 v{8+e}, v{8+e}, v{16+e}")
            a(f"v_add_f32 v{24+e}, v{24+e}, v{32+e}")
            a(f"v_add_f32 v{8+e}, v{8+e}, v{24+e}")
        for h in range(2):
            s = 8 + 4 * h; x = 40 + 2 * h
            a(f"v_cvt_pk_bf16_f32 v44, v{s}, v{s+1}")
            a(f"v_cvt_pk_bf16_f32 v45, v{s+2}, v{s+3}")
            for k in range(2):
                a(f"v_lshlrev_b32 v{s+2*k}, 16, v{44+k}")
                a(f"v_and_b32 v{s+2*k+1}, 0xffff0000, v{44+k}")
                a(f"v_lshlrev_b32 v46, 16, v{x+k}")
                a(f"v_and_b32 v47, 0xffff0000, v{x+k}")
                a(f"v_add_f32 v{s+2*k}, v{s+2*k}, v46")
                a(f"v_add_f32 v{s+2*k+1}, v{s+2*k+1}, v47")
                a(f"v_cvt_pk_bf16_f32 v{x+k}, v{s+2*k}, v{s+2*k+1}")
        a(f"ds_write_b64 v{t[4]}, v[40:41] offset:{LNB}")
        a(f"ds_write_b64 v{t[5]}, v[42:43] offset:{LNB}")
        a("s_waitcnt lgkmcnt(0)")
        a("s_barrier")
        a(f"s_cmp_lg_u32 {sWave}, 3")
        a("s_cbranch_scc1 L_idle")
        self.ln_lds_addr(t[2])
        for i in range(3):
            a(f"ds_read_b128 v[{16+4*i}:{19+4*i}], v{t[2]} offset:{LNB+512*i}")
        a("s_waitcnt lgkmcnt(0)")
        self.dbg(list(range(16, 28)), 26)
        a(f"s_mov_b32 {sWB}, {W1_OFF}")
        a(f"s_mov_b32 {sCaller}, 1")
        a("s_branch L_lngemv")

    def s2_epi(self):
        a = self.a; t = vT
        a.label("L_s2_epi")
        self.bf16r(28, 28)
        a(f"v_mul_f32 v29, {0x80000000 | LOG2E:#x}, v28")
        a("v_exp_f32 v29, v29")
        a("v_add_f32 v29, 1.0, v29")
        a("v_rcp_f32 v29, v29")
        a("v_mul_f32 v28, v28, v29")
        self.dbg([28], 38)
        self.pack_pairs(t[0], 28, t[1])
        a(f"s_mul_i32 {sT[0]}, {sLay}, {E3_L}")
        a(f"s_lshl_b32 {sT[1]}, {sS2j}, 7")
        a(f"s_add_u32 {sT[0]}, {sT[0]}, {sT[1]}")
        a(f"s_add_u32 {sT[0]}, {sT[0]}, {E3}")
        a(f"v_lshrrev_b32 v{t[2]}, 4, {vLane}")
        a(f"v_lshlrev_b32 v{t[2]}, 5, v{t[2]}")
        a(f"v_and_b32 v{t[3]}, 15, {vLane}")
        a(f"v_lshlrev_b32 v{t[3]}, 1, v{t[3]}")
        a(f"v_add_u32 v{t[2]}, v{t[2]}, v{t[3]}")
        a("s_mov_b64 exec, 0x55555555")
        a(f"buffer_store_dword v{t[0]}, v{t[2]}, {SRD_E}, {sT[0]} offen sc1")
        a("s_mov_b64 exec, -1")
        a("s_branch L_after_s12")

    def s3(self):
        a = self.a; c = self.c; t = vT
        a(f"v_lshrrev_b32 v{t[0]}, 5, {vLane}")
        a(f"v_lshlrev_b32 v{t[0]}, 1, v{t[0]}")
        a(f"v_bfe_u32 v{t[1]}, {vLane}, 3, 1")
        a(f"v_add_u32 v{t[0]}, v{t[0]}, v{t[1]}")
        a(f"v_mul_u32_u24 v{t[0]}, 5120, v{t[0]}")
        a(f"v_bfe_u32 v{t[1]}, {vLane}, 4, 1")
        a(f"v_lshlrev_b32 v{t[2]}, 6, v{t[1]}")
        a(f"v_add_u32 v{t[0]}, v{t[0]}, v{t[2]}")
        a(f"v_and_b32 v{t[2]}, 7, {vLane}")
        a(f"v_lshlrev_b32 v{t[3]}, 2, v{t[2]}")
        a(f"v_add_u32 v{t[0]}, v{t[0]}, v{t[3]}")
        a(f"s_lshr_b32 {sT[0]}, {sS3j}, 1")
        a(f"s_lshl_b32 {sT[0]}, {sT[0]}, 7")
        a(f"s_and_b32 {sT[1]}, {sS3j}, 1")
        a(f"s_lshl_b32 {sT[1]}, {sT[1]}, 5")
        a(f"s_add_u32 {sT[0]}, {sT[0]}, {sT[1]}")
        a(f"s_mul_i32 {sT[1]}, {sLay}, {E2_L}")
        a(f"s_add_u32 {sT[0]}, {sT[0]}, {sT[1]}")
        a(f"s_add_u32 {sT[0]}, {sT[0]}, {E2}")
        a(f"v_mul_u32_u24 v{t[1]}, 1280, v{t[1]}")
        a(f"v_lshlrev_b32 v{t[2]}, 1, v{t[2]}")
        a(f"v_add_u32 v{t[1]}, v{t[1]}, v{t[2]}")
        a(f"s_lshl_b32 {sT[1]}, {sS3j}, 4")
        a(f"v_add_u32 v{t[1]}, {sT[1]}, v{t[1]}")
        a(f"ds_read_u16 v9, v{t[1]} offset:{XRES}")
        a(f"s_mov_b32 {sCnt}, 0")
        a.label("L_s3_x1")
        a(f"buffer_load_dword v8, v{t[0]}, {SRD_E}, {sT[0]} offen sc1")
        a("s_waitcnt vmcnt(0) lgkmcnt(0)")
        self.sentinel_check([8], t[2], "L_s3_x1")
        a("v_add_f32_dpp v8, v8, v8 row_ror:8 row_mask:0xf bank_mask:0xf")
        a(f"v_mov_b32 v10, v8")
        a("v_permlane32_swap_b32 v8, v10")
        a("v_add_f32 v8, v8, v10")
        self.bf16r(8, 8)
        a("v_lshlrev_b32 v9, 16, v9")
        a("v_add_f32 v8, v8, v9")
        self.bf16r(52, 8)
        a(f"v_mov_b32 v53, v{t[1]}")
        a(f"v_lshrrev_b32 v{t[0]}, 2, {vLane}")
        a(f"v_lshlrev_b32 v{t[0]}, 7, v{t[0]}")
        a(f"v_and_b32 v{t[1]}, 3, {vLane}")
        a(f"v_lshlrev_b32 v{t[1]}, 4, v{t[1]}")
        a(f"v_add_u32 v{t[0]}, v{t[0]}, v{t[1]}")
        a(f"v_mov_b32 v{t[2]}, v{t[0]}")
        a("s_mov_b64 exec, 0xffff000000000000")
        a(f"v_subrev_u32 v{t[2]}, {4*128}, v{t[0]}")
        a("s_mov_b64 exec, -1")
        a(f"s_mul_i32 {sT[0]}, {sLay}, {E3_L}")
        a(f"s_add_u32 {sT[0]}, {sT[0]}, {E3}")
        for i in range(7): a(f"s_add_u32 {sT[1+i]}, {sT[0]}, {2048*i}")
        a(f"s_mov_b32 {sCnt}, 0")
        a.label("L_s3_h")
        for i in range(7):
            va = t[0] if i < 6 else t[2]
            a(f"buffer_load_dwordx4 v[{8+4*i}:{11+4*i}], v{va}, {SRD_E}, {sT[1+i]} offen sc1")
        a("s_waitcnt vmcnt(0)")
        self.sentinel_check(range(8, 36), t[3], "L_s3_h")
        a(f"v_bfe_u32 v{t[3]}, {vLane}, 1, 1")
        a(f"v_mul_u32_u24 v{t[3]}, 3456, v{t[3]}")
        a(f"v_and_b32 v{t[4]}, 1, {vLane}")
        a(f"v_lshlrev_b32 v{t[4]}, 4, v{t[4]}")
        a(f"v_add_u32 v{t[3]}, v{t[3]}, v{t[4]}")
        a(f"v_lshrrev_b32 v{t[4]}, 2, {vLane}")
        a(f"v_lshlrev_b32 v{t[4]}, 5, v{t[4]}")
        a(f"v_add_u32 v{t[3]}, v{t[3]}, v{t[4]}")
        for i in range(6):
            a(f"ds_write_b128 v{t[3]}, v[{8+4*i}:{11+4*i}] offset:{VEC_S3 + 512*i}")
        a("s_mov_b64 exec, 0xffffffffffff")
        a(f"ds_write_b128 v{t[3]}, v[32:35] offset:{VEC_S3 + 512*6}")
        a("s_mov_b64 exec, -1")
        vA = t[0]; vB = t[1]
        a(f"v_bfe_u32 v{vA}, {vLane}, 2, 1")
        a(f"v_mul_u32_u24 v{vA}, 3456, v{vA}")
        a(f"v_and_b32 v{t[4]}, 1, {vLane}")
        a(f"v_mul_u32_u24 v{t[4]}, 1728, v{t[4]}")
        a(f"v_add_u32 v{vA}, v{vA}, v{t[4]}")
        a(f"v_lshrrev_b32 v{t[4]}, 4, {vLane}")
        a(f"v_lshlrev_b32 v{t[5]}, 4, v{t[4]}")
        a(f"v_add_u32 v{vA}, v{vA}, v{t[5]}")
        a(f"v_lshlrev_b32 v{vB}, 3, v{t[4]}")
        a(f"v_bfe_u32 v{t[5]}, {vLane}, 2, 2")
        a(f"v_add_u32 v{vB}, v{vB}, v{t[5]}")
        a(f"v_bfe_u32 v{t[5]}, {vLane}, 1, 1")
        a(f"v_mul_u32_u24 v{t[5]}, 864, v{t[5]}")
        a(f"v_add_u32 v{vB}, v{vB}, v{t[5]}")
        a(f"v_lshlrev_b32 v{vB}, 4, v{vB}")
        a(f"v_and_b32 v{t[5]}, 1, {vLane}")
        a(f"v_lshlrev_b32 v{t[5]}, 3, v{t[5]}")
        a(f"v_add_u32 v{vB}, v{vB}, v{t[5]}")
        a("s_waitcnt lgkmcnt(0)")
        self.gemv(vA, VEC_S3, 64, vB, W2_OFF, 512, 64, 27, 8, R0=16)
        a("v_add_f32_dpp v8, v9, v8 row_ror:8 row_mask:0xf bank_mask:0x3")
        self.bf16r(8, 8)
        a("v_add_f32 v8, v8, v52")
        self.dbg([8], 39)
        self.pack_pairs(t[0], 8, t[1])
        a("s_mov_b64 exec, 0x00550055")
        a(f"s_cmp_eq_u32 {sPhase}, 2")
        a("s_cbranch_scc1 L_s3_final")
        a(f"v_lshrrev_b32 v{t[2]}, 4, {vLane}")
        a(f"v_lshlrev_b32 v{t[2]}, 4, v{t[2]}")
        a(f"v_and_b32 v{t[3]}, 7, {vLane}")
        a(f"v_lshlrev_b32 v{t[3]}, 1, v{t[3]}")
        a(f"v_add_u32 v{t[2]}, v{t[2]}, v{t[3]}")
        a(f"s_lshl_b32 {sT[0]}, {sS3j}, 7")
        a(f"s_add_u32 {sT[0]}, {sT[0]}, {E4}")
        a(f"buffer_store_dword v{t[0]}, v{t[2]}, {SRD_E}, {sT[0]} offen sc1")
        a("s_mov_b64 exec, -1")
        a("s_branch L_s3_done")
        a.label("L_s3_final")
        self.srd(SRD_W, pOUT, 2560)
        a(f"buffer_store_dword v{t[0]}, v53, {SRD_W}, 0 offen")
        a("s_mov_b64 exec, -1")
        a.label("L_s3_done")

    def build(self):
        a = self.a; c = self.c
        self.plan(); self.assign_first()
        hdr = open("interleave_layers__gqa_block_cached__dense_activation_silu__decode.s.ref").read().split("\n")
        head = [l for l in hdr if l.startswith(";") and "@launch" not in l and l.startswith("; ")][:0]
        a(f"; @launch grid=(256,1,1) block=(256,1,1) lds={LDS_TOTAL}")
        a('.amdgcn_target "amdgcn-amd-amdhsa--gfx950"')
        a(".text")
        a(f".globl {NAME}")
        a(".p2align 8")
        a(f".type {NAME},@function")
        a.label(NAME)
        self.prologue()
        a.label("L_issue1")
        self.issue_first(0, None)
        a("s_branch L_pass1")
        self.s4()
        self.run_pass(1)
        self.run_pass(2)
        self.chain()
        self.s2_epi()
        a.label("L_end")
        a("s_endpgm")
        a('.section .rodata,"a"')
        a(".p2align 6")
        a(f".amdhsa_kernel {NAME}")
        a("  .amdhsa_next_free_vgpr 512".strip())
        for l in (".amdhsa_next_free_sgpr 102", ".amdhsa_accum_offset 256", ".amdhsa_group_segment_fixed_size 0",
                  ".amdhsa_kernarg_size 88", ".amdhsa_user_sgpr_count 2", ".amdhsa_user_sgpr_kernarg_segment_ptr 1",
                  ".amdhsa_system_sgpr_workgroup_id_x 1"):
            a(l)
        a(".end_amdhsa_kernel")
        return a.finish()

if __name__ == "__main__":
    ap = argparse.ArgumentParser()
    ap.add_argument("-o", default="interleave_layers__gqa_block_cached__dense_activation_silu__decode.s")
    ap.add_argument("--nR", type=int, default=0)
    ap.add_argument("--nLds", type=int, default=0)
    ap.add_argument("--debug", action="store_true")
    ap.add_argument("--dbgphase", type=int, default=0)
    ap.add_argument("--kv", default="nt")
    ap.add_argument("--wf", default="")
    ap.add_argument("--rotmul", type=int, default=5)
    ap.add_argument("--window", type=int, default=63)
    ap.add_argument("--w3pre", type=int, default=0)
    args = ap.parse_args()
    c = Cfg()
    c.nR = args.nR; c.nLds = args.nLds; c.debug = args.debug; c.kv_flags = args.kv; c.w_flags = args.wf
    c.dbg_phase = args.dbgphase; c.rotmul = args.rotmul; c.window = args.window; c.w3_pre = args.w3pre
    k = K(c)
    txt = k.build()
    open(args.o, "w").write(txt)
    print("wrote", args.o, len(txt), "bytes;", txt.count("\n"), "lines; nops inserted:", k.a.nnop)
```

```python
import sys, argparse
from asmlib import Asm

NAME = "interleave_layers__gqa_block_cached__dense_activation_silu__decode_kernel"

class Cfg:
    nR = 0
    nLds = 0
    window = 63
    kv_flags = "nt"
    w_flags = ""
    debug = False
    prof = False
    dbg_phase = 0
    spin = 40000
    rotmul = 5
    first = 1000
    depth0 = 16

POOL = 0
WO_OFF = 0; W1_OFF = 32768; WQ_OFF = 0; W2_OFF = 20480
VEC_S1 = 53248; VEC_S3 = 48128
XRES = 57344
LNB = XRES + 2560
COMB = LNB
RED = LNB + 2560
QB = RED + 512
FLAG = QB + 256
CELLS = 63488
LDS_TOTAL = 163840
assert FLAG + 64 <= CELLS

E1 = 0;            E1_STRIDE = 640;  E1_L = 256 * 640
E2 = E1 + 2 * E1_L;  E2_L = 160 * 128
E3 = E2 + 2 * E2_L;  E3_L = 108 * 128
E4 = E3 + 2 * E3_L
E5 = E4 + 80 * 128;  E5_L = 256 * 128
E_END = E5 + 2 * E5_L
assert E_END <= 524288
E_SIZE = 524288
DBG_OFF = 1 << 20

sW = "s2"; sWave = "s3"
SRD_K = "s[8:11]"; SRD_V = "s[12:15]"; SRD_E = "s[16:19]"; SRD_W = "s[20:23]"
def sOff(hb): return f"s{24+hb}"
pX = (40, 41); pK = (42, 43); pV = (44, 45); pWQ = (46, 47); pWO = (48, 49); pW1 = (52, 53); pW2 = (54, 55)
pOUT = (56, 57); pDBG = (58, 59); pWS = (60, 61)
sX = "s62"; sY = "s63"
sRole = "s64"
sS1cg = "s65"; sS1kg = "s66"; sS2j = "s67"; sS3j = "s68"; sS4cg = "s69"
sPhase = "s70"
sCaller = "s71"
sLay = "s72"
sT = [f"s{i}" for i in range(74, 90)]
sCnt = "s73"
sWB = "s90"
sLdsB = "s91"
SRD_D = "s[92:95]"

vLane = "v0"; vOffK = "v1"; vOffV = "v2"; vOffV2 = "v3"
vM = [4, 5, 6, 7]
vQ = 8
vS = 16
vO = 24
vD = 28
vL = 36
vLsum = 52; vMax = 53
vT = list(range(54, 64))

def vr(b, n=1): return f"v{b}" if n == 1 else f"v[{b}:{b+n-1}]"

LOG2E = 0x3fb8aa3b
SCALE = 0x3db504f3

class Cell:
    def __init__(self, kind, base): self.kind = kind; self.base = base
    def reg(self): return f"{self.kind}[{self.base}:{self.base+3}]"
    def __repr__(self): return f"{self.kind}{self.base}"

class K:
    def __init__(self, cfg):
        self.c = cfg
        self.a = Asm()

    def bf16r(self, dst, src):
        a = self.a
        a(f"v_cvt_pk_bf16_f32 v{dst}, v{src}, v{src}")
        a(f"v_and_b32 v{dst}, 0xffff0000, v{dst}")

    def red_all(self, v, t, op):
        a = self.a
        for ctl in ("quad_perm:[1,0,3,2]", "quad_perm:[2,3,0,1]", "row_ror:4", "row_ror:8"):
            a(f"{op}_dpp v{v}, v{v}, v{v} {ctl} row_mask:0xf bank_mask:0xf")
        self.red_rows(v, t, op)

    def red_rows(self, v, t, op):
        a = self.a
        a(f"v_mov_b32 v{t}, v{v}")
        a(f"v_permlane16_swap_b32 v{v}, v{t}")
        a(f"{op} v{v}, v{v}, v{t}")
        a(f"v_mov_b32 v{t}, v{v}")
        a(f"v_permlane32_swap_b32 v{v}, v{t}")
        a(f"{op} v{v}, v{v}, v{t}")

    def sentinel_check(self, regs, t, lab_retry, lab_to=None):
        a = self.a
        regs = list(regs)
        if len(regs) == 1:
            a(f"v_cmp_eq_u32 vcc, -1, v{regs[0]}")
        else:
            if len(regs) == 2:
                a(f"v_max_u32 v{t}, v{regs[0]}, v{regs[1]}"); k = 2
            else:
                a(f"v_max3_u32 v{t}, v{regs[0]}, v{regs[1]}, v{regs[2]}"); k = 3
            while k + 1 < len(regs):
                a(f"v_max3_u32 v{t}, v{t}, v{regs[k]}, v{regs[k+1]}"); k += 2
            if k < len(regs):
                a(f"v_max_u32 v{t}, v{t}, v{regs[k]}")
            a(f"v_cmp_eq_u32 vcc, -1, v{t}")
        done = a.newlabel("L_pd")
        a(f"s_add_u32 {sCnt}, {sCnt}, 1")
        a(f"s_cmp_gt_u32 {sCnt}, {self.c.spin}")
        a(f"s_cbranch_scc1 {done}")
        a(f"s_cbranch_vccnz {lab_retry}")
        a.label(done)

    def srd(self, srd, ptr, nbytes):
        a = self.a
        b = int(srd[2:srd.index(":")])
        a(f"s_mov_b32 s{b}, s{ptr[0]}")
        a(f"s_mov_b32 s{b+1}, s{ptr[1]}")
        a(f"s_mov_b32 s{b+2}, {nbytes}")
        a(f"s_mov_b32 s{b+3}, 0x20000")

    def dbg(self, regs, slot, cond=None):
        if not self.c.debug: return
        a = self.a
        skip = a.newlabel("L_dbgskip")
        a(f"s_cmp_lg_u32 {sPhase}, {self.c.dbg_phase}")
        a(f"s_cbranch_scc1 {skip}")
        a(f"s_lshl_b32 s96, {sW}, 2")
        a(f"s_add_u32 s96, s96, {sWave}")
        a(f"s_lshl_b32 s96, s96, 14")
        a(f"v_lshlrev_b32 v63, 2, {vLane}")
        for k, r in enumerate(regs):
            a(f"s_add_u32 s97, s96, {(slot + k) * 256}")
            a(f"buffer_store_dword v{r}, v63, {SRD_D}, s97 offen")
        a("s_waitcnt vmcnt(0)")
        a.label(skip)

    def stamp(self, slot, p0=False):
        if not self.c.prof: return
        a = self.a
        if p0:
            skip = a.newlabel("L_stskip")
            a(f"s_cmp_lg_u32 {sPhase}, 0")
            a(f"s_cbranch_scc1 {skip}")
            self.stamp(slot)
            a.label(skip)
            return
        a("s_memrealtime s[98:99]")
        a(f"s_mul_i32 s97, {sPhase}, 20")
        a(f"s_add_u32 m0, s97, {slot}")
        a("s_waitcnt lgkmcnt(0)")
        a("v_writelane_b32 v255, s98, m0")

    def stamp_flush(self):
        if not self.c.prof: return
        a = self.a
        a(f"s_lshl_b32 s96, {sW}, 2")
        a(f"s_add_u32 s96, s96, {sWave}")
        a(f"s_lshl_b32 s96, s96, 8")
        a(f"v_lshlrev_b32 v63, 2, {vLane}")
        a(f"buffer_store_dword v255, v63, {SRD_D}, s96 offen")
        a("s_waitcnt vmcnt(0)")

    def dma_loop(self, ptr, nbytes, voff, n, src0, src_step, lds0, k0, step):
        a = self.a
        self.srd(SRD_W, ptr, nbytes)
        t0, t1, t2 = sT[0], sT[1], sT[2]
        a(f"s_mov_b32 {t0}, {k0}")
        lab = a.newlabel("L_dma"); end = a.newlabel("L_dmae")
        a(f"s_cmp_ge_u32 {t0}, {n}")
        a(f"s_cbranch_scc1 {end}")
        a.label(lab)
        a(f"s_mul_i32 {t1}, {t0}, {src_step}")
        a(f"s_add_u32 {t1}, {t1}, {src0}")
        a(f"s_lshl_b32 {t2}, {t0}, 10")
        a(f"s_add_u32 m0, {t2}, {lds0}")
        a(f"buffer_load_dwordx4 {voff}, {SRD_W}, {t1} offen {self.c.w_flags} lds")
        a(f"s_add_u32 {t0}, {t0}, {step}")
        a(f"s_cmp_lt_u32 {t0}, {n}")
        a(f"s_cbranch_scc1 {lab}")
        a.label(end)

    def dma_wq(self, lds0, k0, step):
        a = self.a
        t = vT[0]
        a(f"v_lshrrev_b32 v{t}, 1, {vLane}")
        a(f"v_lshlrev_b32 v{t}, 13, v{t}")
        a(f"v_and_b32 v{t+1}, 1, {vLane}")
        a(f"v_lshlrev_b32 v{t+1}, 4, v{t+1}")
        a(f"v_add_u32 v{t}, v{t}, v{t+1}")
        a(f"s_lshl_b32 {sT[3]}, {sS4cg}, 5")
        self.dma_loop(pWQ, 640 * 8192, f"v{t}", 20, sT[3], 32 * 8192, lds0, k0, step)

    def dma_wo(self):
        a = self.a
        a(f"v_lshrrev_b32 v{vT[2]}, 1, {vLane}")
        a(f"v_and_b32 v{vT[3]}, 1, {vLane}")
        a(f"v_lshlrev_b32 v{vT[3]}, 4, v{vT[3]}")
        a(f"v_mul_u32_u24 v{vT[4]}, 1280, v{vT[2]}")
        a(f"v_add_u32 v{vT[4]}, v{vT[4]}, v{vT[3]}")
        a(f"s_mul_i32 {sT[3]}, {sS1kg}, {1024*1280}")
        a(f"s_lshl_b32 {sT[4]}, {sS1cg}, 5")
        a(f"s_add_u32 {sT[3]}, {sT[3]}, {sT[4]}")
        self.dma_loop(pWO, 4096 * 1280, f"v{vT[4]}", 32, sT[3], 32 * 1280, WO_OFF, sWave, 3)

    def pro_common(self):
        a = self.a; c = self.c
        t = vT
        a(f"v_and_b32 v{t[0]}, 7, {vLane}")
        a(f"v_lshlrev_b32 {vOffK}, 10, v{t[0]}")
        a(f"v_lshrrev_b32 v{t[0]}, 3, {vLane}")
        a(f"v_and_b32 v{t[0]}, 1, v{t[0]}")
        a(f"v_lshlrev_b32 v{t[0]}, 6, v{t[0]}")
        a(f"v_add_u32 {vOffK}, {vOffK}, v{t[0]}")
        a(f"v_lshrrev_b32 v{t[0]}, 4, {vLane}")
        a(f"v_lshlrev_b32 v{t[0]}, 4, v{t[0]}")
        a(f"v_add_u32 {vOffK}, {vOffK}, v{t[0]}")
        a(f"v_add_u32 {vOffV2}, 4096, {vOffV}")
        a(f"s_lshl_b32 {sT[0]}, {sW}, 2")
        a(f"s_add_u32 {sT[0]}, {sT[0]}, {sWave}")
        a(f"s_lshl_b32 {sT[1]}, {sT[0]}, 17")
        for srd, p in ((8, pK), (12, pV)):
            a(f"s_add_u32 s{srd}, s{p[0]}, {sT[1]}")
            a(f"s_addc_u32 s{srd+1}, s{p[1]}, 0")
            a(f"s_mov_b32 s{srd+2}, 0x20000")
            a(f"s_mov_b32 s{srd+3}, 0x20000")
        a(f"s_mul_i32 {sT[1]}, {sT[0]}, {c.rotmul}")
        a(f"s_lshr_b32 {sT[2]}, {sT[0]}, 4")
        a(f"s_add_u32 {sT[1]}, {sT[1]}, {sT[2]}")
        for hb in range(16):
            a(f"s_add_u32 {sT[2]}, {sT[1]}, {hb}")
            a(f"s_and_b32 {sT[2]}, {sT[2]}, 15")
            a(f"s_lshl_b32 {sOff(hb)}, {sT[2]}, 13")
        a(f"s_mul_i32 {sLdsB}, {sWave}, {c.nLds*1024}")

    def pro_late(self):
        a = self.a; c = self.c; t = vT
        a(f"v_and_b32 v{t[0]}, 15, {vLane}")
        a(f"v_and_b32 v{t[1]}, 1, {vLane}")
        a(f"v_mov_b32 v{t[2]}, 0xffff")
        a(f"v_mov_b32 v{t[3]}, 0xffff0000")
        a(f"v_cmp_eq_u32 vcc, 1, v{t[1]}")
        a(f"v_cndmask_b32 v{t[2]}, v{t[2]}, v{t[3]}, vcc")
        a(f"v_lshrrev_b32 v{t[0]}, 1, v{t[0]}")
        for r in range(4):
            a(f"v_cmp_eq_u32 vcc, {r}, v{t[0]}")
            a(f"v_cndmask_b32 v{vM[r]}, 0, v{t[2]}, vcc")
        a(f"s_mov_b32 {sRole}, 0")
        a(f"s_and_b32 {sS1kg}, {sX}, 3")
        a(f"s_lshr_b32 {sT[0]}, {sX}, 2")
        a(f"s_mul_i32 {sT[0]}, {sT[0]}, 5")
        a(f"s_lshr_b32 {sT[1]}, {sY}, 2")
        a(f"s_add_u32 {sT[0]}, {sT[0]}, {sT[1]}")
        a(f"s_lshl_b32 {sT[0]}, {sT[0]}, 2")
        a(f"s_and_b32 {sT[1]}, {sY}, 3")
        a(f"s_add_u32 {sS1cg}, {sT[0]}, {sT[1]}")
        a(f"s_cmp_lt_u32 {sY}, 20")
        a(f"s_cselect_b32 {sRole}, 1, 0")
        a(f"s_mul_i32 {sS2j}, {sX}, 14")
        a(f"s_add_u32 {sS2j}, {sS2j}, {sY}")
        a(f"s_cmp_lt_u32 {sS2j}, 108")
        a(f"s_cselect_b32 {sT[0]}, 2, 0")
        a(f"s_cmp_lt_u32 {sY}, 14")
        a(f"s_cselect_b32 {sT[0]}, {sT[0]}, 0")
        a(f"s_or_b32 {sRole}, {sRole}, {sT[0]}")
        a(f"s_mul_i32 {sS3j}, {sX}, 10")
        a(f"s_add_u32 {sS3j}, {sS3j}, {sY}")
        a(f"s_sub_u32 {sS3j}, {sS3j}, 20")
        a(f"s_sub_u32 {sT[0]}, {sY}, 20")
        a(f"s_cmp_lt_u32 {sT[0]}, 10")
        a(f"s_cselect_b32 {sT[0]}, 4, 0")
        a(f"s_or_b32 {sRole}, {sRole}, {sT[0]}")
        if c.debug or c.prof:
            a(f"s_add_u32 s92, s{pWS[0]}, {DBG_OFF}")
            a(f"s_addc_u32 s93, s{pWS[1]}, 0")
            a(f"s_mov_b32 s94, {1024*64*256}")
            a("s_mov_b32 s95, 0x20000")

    def role_dma(self):
        a = self.a
        a(f"s_bitcmp1_b32 {sRole}, 0")
        a("s_cbranch_scc0 L_no_s1w")
        self.dma_wo()
        a(f"s_bitcmp1_b32 {sRole}, 1")
        a("s_cbranch_scc0 L_wdone")
        a(f"v_mul_u32_u24 v{vT[4]}, 3456, v{vT[2]}")
        a(f"v_add_u32 v{vT[4]}, v{vT[4]}, v{vT[3]}")
        a(f"s_lshl_b32 {sT[3]}, {sS2j}, 5")
        self.dma_loop(pW1, 640 * 3456, f"v{vT[4]}", 20, sT[3], 32 * 3456, W1_OFF, sWave, 3)
        a("s_branch L_wdone")
        a.label("L_no_s1w")
        a(f"s_bitcmp1_b32 {sRole}, 2")
        a("s_cbranch_scc0 L_wdone")
        a(f"v_mul_u32_u24 v{vT[4]}, 1280, {vLane}")
        a(f"s_lshl_b32 {sT[3]}, {sS3j}, 4")
        self.dma_loop(pW2, 1728 * 1280, f"v{vT[4]}", 27, sT[3], 64 * 1280, W2_OFF, sWave, 3)
        a.label("L_wdone")

    def prologue(self):
        a = self.a; c = self.c
        a(f"s_cmp_ge_u32 {sW}, 256")
        a("s_cbranch_scc1 L_end")
        a("s_load_dwordx8 s[40:47], s[0:1], 0")
        a("s_load_dwordx4 s[48:51], s[0:1], 32")
        a("s_load_dwordx8 s[52:59], s[0:1], 48")
        a("s_load_dwordx2 s[60:61], s[0:1], 80")
        a("v_lshrrev_b32 v1, 6, v0")
        a(f"v_readfirstlane_b32 {sWave}, v1")
        a("v_and_b32 v0, 63, v0")
        a(f"v_lshlrev_b32 {vOffV}, 4, {vLane}")
        a(f"s_and_b32 {sX}, {sW}, 7")
        a(f"s_lshr_b32 {sY}, {sW}, 3")
        a(f"s_lshr_b32 {sT[0]}, {sY}, 2")
        a(f"s_lshl_b32 {sT[0]}, {sT[0]}, 3")
        a(f"s_add_u32 {sT[0]}, {sT[0]}, {sX}")
        a(f"s_lshl_b32 {sT[0]}, {sT[0]}, 2")
        a(f"s_and_b32 {sT[1]}, {sY}, 3")
        a(f"s_add_u32 {sS4cg}, {sT[0]}, {sT[1]}")
        a(f"s_mov_b32 {sPhase}, 0")
        a(f"s_mov_b32 {sLay}, 0")
        if c.prof: a("v_mov_b32 v255, 0")
        self.stamp(0)
        a(f"s_cmp_eq_u32 {sWave}, 3")
        a("s_cbranch_scc1 L_w3_start")
        a("s_waitcnt lgkmcnt(0)")
        self.stamp(6)
        self.pro_common()
        self.stamp(7)
        a("s_barrier")
        self.issue_first(c.depth0)
        self.stamp(8)
        self.pro_late()
        self.srd(SRD_E, pWS, E_SIZE)
        self.stamp(1)
        a(f"v_mov_b32 v{vT[0]}, 0")
        a(f"s_mov_b32 {sCnt}, 0")
        a.label("L_flag")
        a(f"ds_read_b32 v{vT[1]}, v{vT[0]} offset:{FLAG}")
        a(f"s_add_u32 {sCnt}, {sCnt}, 1")
        a("s_waitcnt lgkmcnt(0)")
        a(f"v_readfirstlane_b32 {sT[0]}, v{vT[1]}")
        a(f"s_cmp_gt_u32 {sCnt}, {c.spin * 64}")
        a("s_cbranch_scc1 L_flag_done")
        a(f"s_cmp_eq_u32 {sT[0]}, 0")
        a("s_cbranch_scc1 L_flag")
        a.label("L_flag_done")
        self.stamp(2)
        a(f"s_waitcnt vmcnt({63 - 19})")
        self.role_dma()
        a("s_branch L_pass1")
        a.label("L_w3_start")
        for k in range(4): a(f"v_mov_b32 v{vQ+k}, -1")
        a(f"s_lshl_b32 {sT[5]}, {sW}, 11")
        self.ln_lds_addr(vT[2])
        a("s_waitcnt lgkmcnt(0)")
        self.srd(SRD_E, pWS, E_SIZE)
        a(f"buffer_store_dwordx4 v[{vQ}:{vQ+3}], {vOffV}, {SRD_E}, {sT[5]} offen sc1")
        a(f"buffer_store_dwordx4 v[{vQ}:{vQ+3}], {vOffV}, {SRD_E}, {sT[5]} offen offset:1024 sc1")
        self.srd(SRD_W, pX, 2560)
        for i in range(3):
            a(f"buffer_load_dwordx4 v[{vS+4*i}:{vS+4*i+3}], v{vT[2]}, {SRD_W}, 0 offen offset:{512*i}")
        self.dma_wq(WQ_OFF, 0, 1)
        a(f"v_mov_b32 v{vT[0]}, 0")
        a(f"ds_write_b32 v{vT[0]}, v{vT[0]} offset:{FLAG}")
        a("s_waitcnt lgkmcnt(0)")
        a("s_barrier")
        self.stamp(6)
        self.pro_common()
        self.pro_late()
        self.stamp(7)
        a("s_waitcnt vmcnt(20)")
        self.stamp(8)
        a("s_mov_b64 exec, 1")
        a(f"v_mov_b32 v{vT[0]}, 0")
        a(f"v_mov_b32 v{vT[1]}, 1")
        a(f"global_atomic_add v{vT[0]}, v{vT[1]}, s[{pDBG[0]}:{pDBG[1]}] sc1")
        a("s_mov_b64 exec, -1")
        a(f"s_mov_b32 {sWB}, {WQ_OFF}")
        a("s_branch L_s4_have_x")

    def ln_lds_addr(self, t):
        a = self.a
        a(f"v_and_b32 v{t}, 1, {vLane}")
        a(f"v_mul_u32_u24 v{t}, 1280, v{t}")
        a(f"v_lshrrev_b32 v{t+1}, 1, {vLane}")
        a(f"v_lshlrev_b32 v{t+1}, 4, v{t+1}")
        a(f"v_add_u32 v{t}, v{t}, v{t+1}")

    def ln_gemv(self):
        a = self.a
        XI = 16; F = 28
        t = vT
        a("s_mov_b64 exec, 0xffffffff00000000")
        for k in range(4): a(f"v_mov_b32 v{XI+8+k}, 0")
        a("s_mov_b64 exec, -1")
        for k in range(12):
            a(f"v_lshlrev_b32 v{F+2*k}, 16, v{XI+k}")
            a(f"v_and_b32 v{F+2*k+1}, 0xffff0000, v{XI+k}")
        A0 = 8
        a(f"v_pk_add_f32 v[{A0}:{A0+1}], v[{F}:{F+1}], v[{F+2}:{F+3}]")
        a(f"v_pk_add_f32 v[{A0+2}:{A0+3}], v[{F+4}:{F+5}], v[{F+6}:{F+7}]")
        for k in range(4, 12, 2):
            a(f"v_pk_add_f32 v[{A0}:{A0+1}], v[{A0}:{A0+1}], v[{F+2*k}:{F+2*k+1}]")
            a(f"v_pk_add_f32 v[{A0+2}:{A0+3}], v[{A0+2}:{A0+3}], v[{F+2*k+2}:{F+2*k+3}]")
        a(f"v_pk_add_f32 v[{A0}:{A0+1}], v[{A0}:{A0+1}], v[{A0+2}:{A0+3}]")
        a(f"v_add_f32 v{t[0]}, v{A0}, v{A0+1}")
        self.red_parity(t[0], t[1])
        a(f"v_mul_f32 v{t[0]}, 0x3acccccd, v{t[0]}")
        a(f"v_sub_f32 v{A0+4}, 0, v{t[0]}")
        a(f"v_sub_f32 v{A0+5}, 0, v{t[0]}")
        a(f"v_mov_b32 v{A0}, 0"); a(f"v_mov_b32 v{A0+1}, 0")
        a(f"v_mov_b32 v{A0+2}, 0"); a(f"v_mov_b32 v{A0+3}, 0")
        for k in range(12):
            if k == 8: a("s_mov_b64 exec, 0xffffffff")
            d = A0 + 6
            acc = A0 + 2 * (k & 1)
            tmp = t[2 + 2 * (k & 1)]
            assert tmp % 2 == 0
            a(f"v_pk_add_f32 v[{tmp}:{tmp+1}], v[{F+2*k}:{F+2*k+1}], v[{A0+4}:{A0+5}]")
            a(f"v_pk_fma_f32 v[{acc}:{acc+1}], v[{tmp}:{tmp+1}], v[{tmp}:{tmp+1}], v[{acc}:{acc+1}]")
        a("s_mov_b64 exec, -1")
        a(f"v_pk_add_f32 v[{A0}:{A0+1}], v[{A0}:{A0+1}], v[{A0+2}:{A0+3}]")
        a(f"v_add_f32 v{t[1]}, v{A0}, v{A0+1}")
        self.red_parity(t[1], t[2])
        a(f"v_mul_f32 v{t[1]}, 0x3acccccd, v{t[1]}")
        self.bf16r(t[1], t[1])
        a(f"v_add_f32 v{t[1]}, 0x3727c5ac, v{t[1]}")
        self.bf16r(t[1], t[1])
        a(f"v_sqrt_f32 v{t[1]}, v{t[1]}")
        self.bf16r(t[1], t[1])
        a(f"v_rcp_f32 v{A0}, v{t[1]}")
        self.bf16r(t[0], t[0])
        a(f"v_mov_b32 v{A0+1}, v{A0}")
        a(f"v_sub_f32 v{A0+4}, 0, v{t[0]}")
        a(f"v_sub_f32 v{A0+5}, 0, v{t[0]}")
        for k in range(12):
            f = F + 2 * k
            a(f"v_pk_add_f32 v[{f}:{f+1}], v[{f}:{f+1}], v[{A0+4}:{A0+5}]")
        for k in range(12):
            f = F + 2 * k
            a(f"v_cvt_pk_bf16_f32 v{XI+k}, v{f}, v{f+1}")
        for k in range(12):
            f = F + 2 * k
            a(f"v_lshlrev_b32 v{f}, 16, v{XI+k}")
            a(f"v_and_b32 v{f+1}, 0xffff0000, v{XI+k}")
        for k in range(12):
            f = F + 2 * k
            a(f"v_pk_mul_f32 v[{f}:{f+1}], v[{f}:{f+1}], v[{A0}:{A0+1}]")
        for k in range(12):
            f = F + 2 * k
            a(f"v_cvt_pk_bf16_f32 v{XI+k}, v{f}, v{f+1}")
        self.ln_lds_addr(t[2])
        a(f"ds_write_b128 v{t[2]}, v[{XI}:{XI+3}] offset:{LNB}")
        a(f"ds_write_b128 v{t[2]}, v[{XI+4}:{XI+7}] offset:{LNB+512}")
        a("s_mov_b64 exec, 0xffffffff")
        a(f"ds_write_b128 v{t[2]}, v[{XI+8}:{XI+11}] offset:{LNB+1024}")
        a("s_mov_b64 exec, -1")
        self.dbg(list(range(XI, XI + 12)), 40)
        vA = t[2]; vB = t[3]
        self.gemv_addr(vA, vB, 1280, 32)
        a(f"v_add_u32 v{vB}, {sWB}, v{vB}")
        self.stamp(9, True)
        a("s_waitcnt vmcnt(1) lgkmcnt(0)")
        self.stamp(10, True)
        self.gemv(vA, LNB, 64, vB, 0, 1024, 128, 20, 28, slots=[8, 16, 32, 40])

    def gemv_addr(self, vA, vB, bstride, rowbytes):
        a = self.a; t = vT
        a(f"v_lshrrev_b32 v{vA}, 2, {vLane}")
        a(f"v_and_b32 v{vA}, 1, v{vA}")
        a(f"v_mul_u32_u24 v{vA}, {bstride}, v{vA}")
        a(f"v_lshrrev_b32 v{t[8]}, 4, {vLane}")
        a(f"v_lshlrev_b32 v{t[9]}, 4, v{t[8]}")
        a(f"v_add_u32 v{vA}, v{vA}, v{t[9]}")
        a(f"v_lshlrev_b32 v{vB}, 3, v{t[8]}")
        a(f"v_bfe_u32 v{t[9]}, {vLane}, 2, 2")
        a(f"v_add_u32 v{vB}, v{vB}, v{t[9]}")
        a(f"v_mul_u32_u24 v{vB}, {rowbytes}, v{vB}")
        a(f"v_and_b32 v{t[9]}, 3, {vLane}")
        a(f"v_lshlrev_b32 v{t[9]}, 3, v{t[9]}")
        a(f"v_add_u32 v{vB}, v{vB}, v{t[9]}")

    def gemv(self, vA, aoff, astep, vB, boff, bstep, b2, n, acc, depth=4, R0=32, slots=None):
        a = self.a
        if slots is None: slots = [R0 + 8 * k for k in range(depth)]
        depth = len(slots)
        def rd(s):
            r = slots[s % depth]
            a(f"ds_read_b128 v[{r}:{r+3}], v{vA} offset:{aoff + astep * s}")
            a(f"ds_read_b64_tr_b16 v[{r+4}:{r+5}], v{vB} offset:{boff + bstep * s}")
            a(f"ds_read_b64_tr_b16 v[{r+6}:{r+7}], v{vB} offset:{boff + bstep * s + b2}")
        for s in range(min(depth, n)): rd(s)
        for s in range(n):
            rem = min(n, s + depth) - (s + 1)
            a(f"s_waitcnt lgkmcnt({3 * rem})")
            r = slots[s % depth]
            cin = "0" if s == 0 else f"v[{acc}:{acc+3}]"
            a(f"v_mfma_f32_16x16x32_bf16 v[{acc}:{acc+3}], v[{r}:{r+3}], v[{r+4}:{r+7}], {cin}")
            if s + depth < n: rd(s + depth)

    def red_parity(self, v, t):
        a = self.a
        for ctl in ("quad_perm:[2,3,0,1]", "row_ror:4", "row_ror:8"):
            a(f"v_add_f32_dpp v{v}, v{v}, v{v} {ctl} row_mask:0xf bank_mask:0xf")
        self.red_rows(v, t, "v_add_f32")

    def pack_pairs(self, dst, src, t):
        a = self.a
        a(f"v_mov_b32_dpp v{t}, v{src} quad_perm:[1,0,3,2] row_mask:0xf bank_mask:0xf")
        a(f"v_cvt_pk_bf16_f32 v{dst}, v{src}, v{t}")

    def s4(self):
        a = self.a; c = self.c; t = vT
        a.label("L_s4")
        a(f"v_lshrrev_b32 v{t[0]}, 1, {vLane}")
        a(f"v_lshlrev_b32 v{t[0]}, 7, v{t[0]}")
        a(f"v_and_b32 v{t[1]}, 1, {vLane}")
        a(f"v_lshlrev_b32 v{t[1]}, 4, v{t[1]}")
        a(f"v_add_u32 v{t[0]}, v{t[0]}, v{t[1]}")
        a(f"s_mov_b32 {sCnt}, 0")
        a(f"v_and_b32 v{t[1]}, 31, {vLane}")
        a(f"v_lshrrev_b32 v{t[2]}, 1, v{t[1]}")
        a(f"v_lshlrev_b32 v{t[2]}, 7, v{t[2]}")
        a(f"v_and_b32 v{t[1]}, 1, {vLane}")
        a(f"v_lshlrev_b32 v{t[1]}, 4, v{t[1]}")
        a(f"v_add_u32 v{t[1]}, v{t[2]}, v{t[1]}")
        a(f"s_mov_b32 {sT[0]}, {E4}")
        a(f"s_mov_b32 {sT[1]}, {E4 + 4096}")
        a(f"s_mov_b32 {sT[2]}, {E4 + 8192}")
        a.label("L_s4_poll")
        a(f"buffer_load_dwordx4 v[16:19], v{t[0]}, {SRD_E}, {sT[0]} offen sc1")
        a(f"buffer_load_dwordx4 v[20:23], v{t[0]}, {SRD_E}, {sT[1]} offen sc1")
        a(f"buffer_load_dwordx4 v[24:27], v{t[1]}, {SRD_E}, {sT[2]} offen sc1")
        a("s_waitcnt vmcnt(0)")
        self.sentinel_check(range(16, 28), t[3], "L_s4_poll")
        self.stamp(16)
        a(f"s_mov_b32 {sWB}, {WQ_OFF}")
        a.label("L_s4_have_x")
        self.ln_lds_addr(t[2])
        a(f"ds_write_b128 v{t[2]}, v[16:19] offset:{XRES}")
        a(f"ds_write_b128 v{t[2]}, v[20:23] offset:{XRES+512}")
        a("s_mov_b64 exec, 0xffffffff")
        a(f"ds_write_b128 v{t[2]}, v[24:27] offset:{XRES+1024}")
        a("s_mov_b64 exec, -1")
        a(f"s_mov_b32 {sCaller}, 0")
        a.label("L_lngemv")
        self.ln_gemv()
        a(f"s_cmp_eq_u32 {sCaller}, 1")
        a("s_cbranch_scc1 L_s2_epi")
        self.stamp(17)
        a(f"s_cmp_eq_u32 {sPhase}, 0")
        a("s_cbranch_scc1 L_s4_nobar")
        a("s_barrier")
        a.label("L_s4_nobar")
        self.dbg([28], 52)
        self.pack_pairs(t[0], 28, t[1])
        a(f"s_cmp_lg_u32 {sPhase}, 0")
        a("s_cbranch_scc1 L_s4_pub")
        a(f"s_mov_b32 {sCnt}, 0")
        a(f"v_mov_b32 v{t[2]}, 0")
        a.label("L_cnt_poll")
        a(f"global_load_dword v{t[3]}, v{t[2]}, s[{pDBG[0]}:{pDBG[1]}] sc1")
        a("s_waitcnt vmcnt(0)")
        a(f"v_cmp_gt_u32 vcc, 256, v{t[3]}")
        a(f"s_add_u32 {sCnt}, {sCnt}, 1")
        a(f"s_cmp_gt_u32 {sCnt}, {c.spin}")
        a("s_cbranch_scc1 L_s4_pub")
        a("s_cbranch_vccnz L_cnt_poll")
        a.label("L_s4_pub")
        self.stamp(11, True)
        a(f"s_mul_i32 {sT[0]}, {sPhase}, {E5_L}")
        a(f"s_add_u32 {sT[0]}, {sT[0]}, {E5}")
        a(f"s_lshl_b32 {sT[1]}, {sS4cg}, 7")
        a(f"s_add_u32 {sT[1]}, {sT[1]}, {sT[0]}")
        a(f"v_lshrrev_b32 v{t[2]}, 4, {vLane}")
        a(f"v_lshlrev_b32 v{t[2]}, 5, v{t[2]}")
        a(f"v_and_b32 v{t[3]}, 15, {vLane}")
        a(f"v_lshlrev_b32 v{t[3]}, 1, v{t[3]}")
        a(f"v_add_u32 v{t[2]}, v{t[2]}, v{t[3]}")
        a("s_mov_b64 exec, 0x55555555")
        a(f"buffer_store_dword v{t[0]}, v{t[2]}, {SRD_E}, {sT[1]} offen sc1")
        a("s_mov_b64 exec, -1")
        a(f"s_lshr_b32 {sT[1]}, {sW}, 2")
        a(f"s_and_b32 {sT[1]}, {sT[1]}, 31")
        a(f"s_lshl_b32 {sT[1]}, {sT[1]}, 10")
        a(f"s_add_u32 {sT[0]}, {sT[0]}, {sT[1]}")
        a(f"s_lshr_b32 {sT[1]}, {sW}, 7")
        a(f"s_lshl_b32 {sT[1]}, {sT[1]}, 5")
        a(f"s_add_u32 {sT[0]}, {sT[0]}, {sT[1]}")
        a(f"v_and_b32 v{t[3]}, 15, {vLane}")
        a(f"v_lshrrev_b32 v{t[2]}, 1, v{t[3]}")
        a(f"v_lshlrev_b32 v{t[2]}, 7, v{t[2]}")
        a(f"v_and_b32 v{t[4]}, 1, {vLane}")
        a(f"v_lshlrev_b32 v{t[4]}, 4, v{t[4]}")
        a(f"v_add_u32 v{t[2]}, v{t[2]}, v{t[4]}")
        a(f"s_mov_b32 {sCnt}, 0")
        a.label("L_q_poll")
        a(f"buffer_load_dwordx4 v[16:19], v{t[2]}, {SRD_E}, {sT[0]} offen sc1")
        a("s_waitcnt vmcnt(0)")
        self.sentinel_check(range(16, 20), t[4], "L_q_poll")
        self.stamp(18)
        a(f"v_lshlrev_b32 v{t[3]}, 4, v{t[3]}")
        a(f"ds_write_b128 v{t[3]}, v[16:19] offset:{QB}")
        a("s_waitcnt lgkmcnt(0)")
        a(f"s_cmp_eq_u32 {sPhase}, 0")
        a("s_cbranch_scc0 L_pass2")
        a(f"v_mov_b32 v{t[3]}, 0")
        a(f"v_mov_b32 v{t[4]}, 1")
        a(f"ds_write_b32 v{t[3]}, v{t[4]} offset:{FLAG}")
        self.stamp(2)
        self.issue_first()
        a("s_branch L_pass1")

    def emit_load(self, ld):
        a = self.a; c = self.c
        kind, r, idx, cell = ld["kind"], ld["r"], ld["i"], ld["cell"]
        if kind == "K":
            t, hf = idx
            hb = 2 * r + (t & 1)
            imm = (t >> 1) * 256 + hf * 128
            voff = vOffK; srd = SRD_K
        else:
            n = idx
            hb = 2 * r + (n >> 3)
            q = n & 7
            imm = (q & 3) * 1024
            voff = vOffV if q < 4 else vOffV2
            srd = SRD_V
        if cell.kind == "l":
            a(f"s_add_u32 m0, {sLdsB}, {cell.base * 1024 - imm + CELLS}")
            a(f"buffer_load_dwordx4 {voff}, {srd}, {sOff(hb)} offen offset:{imm} {c.kv_flags} lds")
        else:
            a(f"buffer_load_dwordx4 {cell.reg()}, {voff}, {srd}, {sOff(hb)} offen offset:{imm} {c.kv_flags}")

    def plan(self):
        c = self.c
        nR = c.nR
        Rr = list(range(nR)); Nr = list(range(nR, 8))
        def kloads(rs):
            out = []
            for r in rs:
                for half in range(2):
                    for g in range(4):
                        for hf in range(2):
                            out.append(dict(kind="K", r=r, i=(2 * g + half, hf), cell=None))
            return out
        def vloads(rs):
            return [dict(kind="V", r=r, i=n, cell=None) for r in rs for n in range(16)]
        regcells = [Cell("a", b) for b in range(0, 256, 4)] + [Cell("v", b) for b in range(64, 252 if c.prof else 256, 4)]
        ldscells = [Cell("l", k) for k in range(c.nLds)]
        KR = kloads(Rr); KN = kloads(Nr)
        nL = min(c.nLds, len(KR)) // 4 * 4
        nKRreg = len(KR) - nL
        assert nKRreg <= len(regcells)
        fixed = regcells[:nKRreg]; ring = regcells[nKRreg:]
        for k, ld in enumerate(KR):
            ld["cell"] = fixed[k] if k < nKRreg else ldscells[k - nKRreg]
            ld["keep"] = True
        VRall = vloads(Rr); VN = vloads(Nr)
        nVR = min(len(VRall), len(ring)) if nR > 0 else 0
        VR = VRall[:nVR]; Vrest = VRall[nVR:]
        for ld in VR: ld["keep"] = True
        self.P = dict(KR=KR, KN=KN, VR=VR, Vrest=Vrest, VN=VN, ring=ring, fixed=fixed)
        self.p1_issue = KN + KR + VN + Vrest + VR

    def issue_first(self, depth=63):
        a = self.a
        comp = 0
        ch = 8 if depth >= 32 else 4
        for k, ld in enumerate(self.p1_issue[:self.p1_first]):
            if k - comp >= depth:
                a(f"s_waitcnt vmcnt({depth - ch})")
                comp = k - (depth - ch)
            self.emit_load(ld)
        self.p1_comp = comp if not hasattr(self, "p1_comp") else min(comp, self.p1_comp)

    def assign_first(self):
        c = self.c
        self.free = list(self.P["ring"])
        n = 0
        for ld in self.p1_issue:
            if n >= c.first: break
            if ld["cell"] is None:
                if not self.free: break
                ld["cell"] = self.free.pop(0)
            n += 1
        self.p1_first = n

    def qk_step(self, lds4, r):
        a = self.a
        D0 = vD; D1 = vD + 4
        regs = []
        if lds4[0]["cell"].kind == "l":
            for k, ld in enumerate(lds4):
                a(f"ds_read_b128 v[{vL+4*k}:{vL+4*k+3}], {vOffV} offset:{0}".replace("offset:0", f"offset:{(ld['cell'].base*1024) % 65536}") if False else
                  f"ds_read_b128 v[{vL+4*k}:{vL+4*k+3}], v{vT[8]} offset:{ld['cell'].base*1024}")
                regs.append(f"v[{vL+4*k}:{vL+4*k+3}]")
            a("s_waitcnt lgkmcnt(0)")
        else:
            regs = [ld["cell"].reg() for ld in lds4]
        q0 = f"v[{vQ}:{vQ+3}]"; q1 = f"v[{vQ+4}:{vQ+7}]"
        a(f"v_mfma_f32_16x16x32_bf16 v[{D0}:{D0+3}], {q0}, {regs[0]}, 0")
        a(f"v_mfma_f32_16x16x32_bf16 v[{D1}:{D1+3}], {q0}, {regs[2]}, 0")
        a(f"v_mfma_f32_16x16x32_bf16 v[{D0}:{D0+3}], {q1}, {regs[1]}, v[{D0}:{D0+3}]")
        a(f"v_mfma_f32_16x16x32_bf16 v[{D1}:{D1+3}], {q1}, {regs[3]}, v[{D1}:{D1+3}]")
        def fin():
            for D, ld in ((D0, lds4[0]), (D1, lds4[2])):
                t = ld["i"][0]
                g = t >> 1; half = t & 1
                if half == 0:
                    a(f"v_add_f32_dpp v{vS+r}, v{D+1}, v{D} row_ror:8 row_mask:{1<<g:#x} bank_mask:0x3")
                else:
                    a(f"v_add_f32_dpp v{vS+r}, v{D}, v{D+1} row_ror:8 row_mask:{1<<g:#x} bank_mask:0xc")
        return fin

    def softmax(self, rs, first, rescale):
        a = self.a; t = vT
        rs = list(rs)
        for k in range(0, len(rs), 2):
            r0 = vS + rs[k]
            r1 = vS + rs[k + 1] if k + 1 < len(rs) else r0
            a(f"v_cvt_pk_bf16_f32 v{t[0]}, v{r0}, v{r1}")
            a(f"v_lshlrev_b32 v{r0}, 16, v{t[0]}")
            if r1 != r0: a(f"v_and_b32 v{r1}, 0xffff0000, v{t[0]}")
            a(f"v_mul_f32 v{r0}, {SCALE:#x}, v{r0}")
            if r1 != r0: a(f"v_mul_f32 v{r1}, {SCALE:#x}, v{r1}")
            a(f"v_cvt_pk_bf16_f32 v{t[0]}, v{r0}, v{r1}")
            a(f"v_lshlrev_b32 v{r0}, 16, v{t[0]}")
            if r1 != r0: a(f"v_and_b32 v{r1}, 0xffff0000, v{t[0]}")
        m = t[1]
        a(f"v_mov_b32 v{m}, v{vS+rs[0]}")
        for r in rs[1:]:
            a(f"v_max_f32 v{m}, v{m}, v{vS+r}")
        if not first:
            a(f"v_max_f32 v{m}, v{m}, v{vMax}")
        self.red_all(m, t[2], "v_max_f32")
        if rescale:
            a(f"v_sub_f32 v{t[2]}, v{vMax}, v{m}")
            a(f"v_mul_f32 v{t[2]}, {LOG2E:#x}, v{t[2]}")
            a(f"v_exp_f32 v{t[2]}, v{t[2]}")
            a(f"v_mul_f32 v{vLsum}, v{vLsum}, v{t[2]}")
            for k in range(4): a(f"v_mul_f32 v{vO+k}, v{vO+k}, v{t[2]}")
        a(f"v_mov_b32 v{vMax}, v{m}")
        if first: a(f"v_mov_b32 v{vLsum}, 0")
        for r in rs:
            a(f"v_sub_f32 v{vS+r}, v{vS+r}, v{m}")
            a(f"v_mul_f32 v{vS+r}, {LOG2E:#x}, v{vS+r}")
            a(f"v_exp_f32 v{vS+r}, v{vS+r}")
        for r in rs:
            a(f"v_add_f32 v{vLsum}, v{vLsum}, v{vS+r}")
            a(f"v_cvt_pk_bf16_f32 v{vS+r}, v{vS+r}, v{vS+r}")

    def pv_afrag(self, ld, buf):
        a = self.a
        A = vD + 4 * buf
        for k in range(4):
            a(f"v_and_b32_dpp v{A+k}, v{vS+ld['r']}, v{vM[k]} row_newbcast:{ld['i']} row_mask:0xf bank_mask:0xf")

    def run_pass(self, pno):
        a = self.a; c = self.c; P = self.P
        a.label(f"L_pass{pno}")
        if pno == 2:
            self.stamp(1)
            a("s_barrier")
            self.stamp(2)
        t = vT
        a(f"v_and_b32 v{t[0]}, 1, {vLane}")
        a(f"v_lshlrev_b32 v{t[0]}, 6, v{t[0]}")
        a(f"v_lshrrev_b32 v{t[1]}, 4, {vLane}")
        a(f"v_lshlrev_b32 v{t[1]}, 4, v{t[1]}")
        a(f"v_add_u32 v{t[0]}, v{t[0]}, v{t[1]}")
        a(f"ds_read_b128 v[{vQ}:{vQ+3}], v{t[0]} offset:{QB}")
        a(f"ds_read_b128 v[{vQ+4}:{vQ+7}], v{t[0]} offset:{QB+128}")
        if c.nLds:
            a(f"v_add_u32 v{t[8]}, {sLdsB}, {vOffV}")
            a(f"v_add_u32 v{t[8]}, {CELLS}, v{t[8]}")
        a("s_waitcnt lgkmcnt(0)")
        if pno == 1:
            issue = self.p1_issue; issued = self.p1_first
            segs = [("K", P["KN"] + P["KR"]), ("SM", list(range(8)), True, False), ("V", P["VN"] + P["Vrest"] + P["VR"])]
            if c.nR == 0: segs = [("K", P["KN"]), ("SM", list(range(8)), True, False), ("V", P["VN"])]
            done = set()
        else:
            import copy
            def fresh(l): return [dict(kind=x["kind"], r=x["r"], i=x["i"], cell=None) for x in l]
            KN = fresh(P["KN"]); VN = fresh(P["VN"]); Vrest = fresh(P["Vrest"])
            issue = Vrest + KN + VN; issued = 0
            held = set(id(l["cell"]) for l in P["KR"] + P["VR"])
            allreg = P["fixed"] + P["ring"]
            self.free = [x for x in allreg if id(x) not in held]
            nR = c.nR
            if nR == 0:
                segs = [("K", KN), ("SM", list(range(8)), True, False), ("V", VN)]
            else:
                segs = [("KR", P["KR"]), ("SM", list(range(nR)), True, False), ("VR", P["VR"]), ("V", Vrest),
                        ("K", KN), ("SM", list(range(nR, 8)), False, True), ("V", VN)]
        pos = {id(ld): k for k, ld in enumerate(issue)}
        st = dict(issued=issued, complete=self.p1_comp if pno == 1 else 0, extra=19, extra_at=issued)
        def try_issue():
            if st["complete"] > st["extra_at"]: st["extra"] = 0
            while st["issued"] < len(issue) and st["issued"] - st["complete"] + st["extra"] < c.window:
                ld = issue[st["issued"]]
                if ld["cell"] is None:
                    if not self.free: break
                    ld["cell"] = self.free.pop(0)
                self.emit_load(ld)
                st["issued"] += 1
        def wait_for(lds):
            ks = [pos[id(l)] for l in lds if id(l) in pos]
            if not ks: return
            k = max(ks)
            assert k < st["issued"], (pno, k, st["issued"])
            if k >= st["complete"]:
                a(f"s_waitcnt vmcnt({st['issued'] - 1 - k})")
                st["complete"] = k + 1
        def release(lds, keep_ok):
            for l in lds:
                if l["cell"].kind == "l": continue
                if keep_ok and l.get("keep"): continue
                self.free.append(l["cell"])
        try_issue()
        firstV = True
        for seg in segs:
            if seg[0] in ("K", "KR"):
                L = seg[1]
                for k in range(0, len(L), 4):
                    grp = L[k:k + 4]
                    wait_for(grp)
                    fin = self.qk_step(grp, grp[0]["r"])
                    release(grp, pno == 1)
                    try_issue()
                    fin()
            elif seg[0] == "SM":
                if pno == 1 or True:
                    self.dbg([vS + r for r in seg[1]], 0 + 8 * (pno - 1)) if seg[2] and len(seg[1]) == 8 else None
                if seg[2]: self.stamp(3)
                self.softmax(seg[1], seg[2], seg[3])
                if seg[2]: self.stamp(4)
                if seg[2]:
                    for k in range(4): a(f"v_mov_b32 v{vO+k}, 0")
            else:
                L = seg[1]
                if not L: continue
                self.pv_afrag(L[0], 0)
                for k, ld in enumerate(L):
                    if k + 1 < len(L): self.pv_afrag(L[k + 1], (k + 1) & 1)
                    wait_for([ld])
                    A = vD + 4 * (k & 1)
                    a(f"v_mfma_f32_16x16x32_bf16 v[{vO}:{vO+3}], v[{A}:{A+3}], {ld['cell'].reg()}, v[{vO}:{vO+3}]")
                    release([ld], pno == 1)
                    try_issue()
        assert st["issued"] == len(issue)
        self.stamp(5)
        self.red_all(vLsum, t[0], "v_add_f32")
        a(f"s_mul_i32 {sT[0]}, {sWave}, 544")
        a(f"v_and_b32 v{t[0]}, 15, {vLane}")
        a(f"v_lshlrev_b32 v{t[0]}, 5, v{t[0]}")
        a(f"v_lshrrev_b32 v{t[1]}, 4, {vLane}")
        a(f"v_lshlrev_b32 v{t[1]}, 4, v{t[1]}")
        a(f"v_add_u32 v{t[0]}, v{t[0]}, v{t[1]}")
        a(f"v_add_u32 v{t[0]}, {sT[0]}, v{t[0]}")
        a("s_mov_b64 exec, 0xffffffff")
        a(f"ds_write_b128 v{t[0]}, v[{vO}:{vO+3}] offset:{COMB}")
        a("s_mov_b64 exec, 1")
        a(f"v_mov_b32 v{t[2]}, v{vMax}")
        a(f"v_mov_b32 v{t[3]}, v{vLsum}")
        a(f"v_mov_b32 v{t[1]}, {sT[0]}")
        a(f"ds_write_b64 v{t[1]}, v[{t[2]}:{t[3]}] offset:{COMB+512}")
        a("s_mov_b64 exec, -1")
        a("s_waitcnt lgkmcnt(0)")
        a(f"s_mov_b32 {sPhase}, {pno}")
        a(f"s_mov_b32 {sLay}, {pno-1}")
        if pno == 1: a("s_branch L_chain")

    def chain(self):
        a = self.a; c = self.c; t = vT
        a.label("L_chain")
        a("s_barrier")
        self.stamp(6)
        a(f"s_cmp_lg_u32 {sWave}, 3")
        a("s_cbranch_scc1 L_comb_done")
        a(f"v_and_b32 v{t[0]}, 31, {vLane}")
        a(f"v_lshlrev_b32 v{t[0]}, 4, v{t[0]}")
        a(f"v_mov_b32 v{t[1]}, 0")
        for w in range(4):
            a(f"ds_read_b128 v[{8+4*w}:{11+4*w}], v{t[0]} offset:{COMB+544*w}")
            a(f"ds_read_b64 v[{24+2*w}:{25+2*w}], v{t[1]} offset:{COMB+544*w+512}")
        a("s_waitcnt lgkmcnt(0)")
        a(f"v_max_f32 v32, v24, v26")
        a(f"v_max3_f32 v32, v32, v28, v30")
        for w in range(4):
            a(f"v_sub_f32 v{24+2*w}, v{24+2*w}, v32")
            a(f"v_mul_f32 v{24+2*w}, {LOG2E:#x}, v{24+2*w}")
            a(f"v_exp_f32 v{24+2*w}, v{24+2*w}")
        a(f"v_mul_f32 v33, v24, v25")
        for w in range(1, 4): a(f"v_fmac_f32 v33, v{24+2*w}, v{25+2*w}")
        for k in range(4):
            a(f"v_mul_f32 v{36+k}, v24, v{8+k}")
            for w in range(1, 4): a(f"v_fmac_f32 v{36+k}, v{24+2*w}, v{8+4*w+k}")
        a("s_mov_b64 exec, 0x100000000")
        a("v_mov_b32 v36, v32"); a("v_mov_b32 v37, v33"); a("v_mov_b32 v38, v32"); a("v_mov_b32 v39, v33")
        a("s_mov_b64 exec, 0x1ffffffff")
        a(f"s_mul_i32 {sT[0]}, {sLay}, {E1_L}")
        a(f"s_mul_i32 {sT[1]}, {sW}, {E1_STRIDE}")
        a(f"s_add_u32 {sT[0]}, {sT[0]}, {sT[1]}")
        if E1: a(f"s_add_u32 {sT[0]}, {sT[0]}, {E1}")
        a(f"buffer_store_dwordx4 v[36:39], {vOffV}, {SRD_E}, {sT[0]} offen sc1")
        a("s_mov_b64 exec, -1")
        self.dbg([36, 37, 38, 39], 16)
        self.stamp(7)
        a.label("L_comb_done")
        a(f"s_bitcmp1_b32 {sRole}, 0")
        a("s_cbranch_scc0 L_no_s1")
        self.s1()
        a(f"s_bitcmp1_b32 {sRole}, 1")
        a("s_cbranch_scc0 L_no_s2")
        self.s2()
        a.label("L_no_s2")
        a(f"s_cmp_lg_u32 {sWave}, 3")
        a("s_cbranch_scc1 L_idle")
        a("s_branch L_after_s12")
        a.label("L_no_s1")
        a(f"s_cmp_lg_u32 {sWave}, 3")
        a("s_cbranch_scc1 L_idle")
        a(f"s_bitcmp1_b32 {sRole}, 2")
        a("s_cbranch_scc0 L_tail_w3")
        self.s3()
        a("s_branch L_tail_w3")
        a.label("L_after_s12")
        a(f"s_cmp_eq_u32 {sPhase}, 2")
        a("s_cbranch_scc1 L_fin")
        self.dma_wq(WQ_OFF, 0, 1)
        a.label("L_tail_w3")
        a(f"s_cmp_eq_u32 {sPhase}, 2")
        a("s_cbranch_scc1 L_fin")
        a("s_branch L_s4")
        a.label("L_idle")
        a(f"s_cmp_eq_u32 {sPhase}, 2")
        a("s_cbranch_scc1 L_fin")
        a("s_barrier")
        a(f"s_bitcmp1_b32 {sRole}, 0")
        a("s_cbranch_scc0 L_pass2")
        self.dma_wo()
        a("s_branch L_pass2")

    def s1(self):
        a = self.a; c = self.c; t = vT
        a(f"s_lshl_b32 {sT[0]}, {sS1kg}, 3")
        a(f"s_lshl_b32 {sT[1]}, {sWave}, 1")
        a(f"s_add_u32 {sT[0]}, {sT[0]}, {sT[1]}")
        a(f"s_mul_i32 {sT[0]}, {sT[0]}, {4*E1_STRIDE}")
        a(f"s_mul_i32 {sT[1]}, {sLay}, {E1_L}")
        a(f"s_add_u32 {sT[0]}, {sT[0]}, {sT[1]}")
        if E1: a(f"s_add_u32 {sT[0]}, {sT[0]}, {E1}")
        a(f"v_and_b32 v{t[0]}, 3, {vLane}")
        a(f"v_bfe_u32 v{t[1]}, {vLane}, 2, 1")
        a(f"v_lshlrev_b32 v{t[1]}, 7, v{t[1]}")
        a(f"v_add_u32 v{t[0]}, v{t[0]}, v{t[1]}")
        a(f"v_bfe_u32 v{t[1]}, {vLane}, 3, 1")
        a(f"v_lshlrev_b32 v{t[1]}, 2, v{t[1]}")
        a(f"v_add_u32 v{t[0]}, v{t[0]}, v{t[1]}")
        a(f"v_mul_u32_u24 v{t[0]}, {E1_STRIDE}, v{t[0]}")
        a(f"s_mov_b32 {sCnt}, 0")
        a.label("L_s1_ml")
        a(f"buffer_load_dwordx2 v[8:9], v{t[0]}, {SRD_E}, {sT[0]} offen offset:512 sc1")
        a("s_waitcnt vmcnt(0)")
        self.sentinel_check([8, 9], t[1], "L_s1_ml")
        self.stamp(8)
        a(f"v_lshrrev_b32 v{t[0]}, 5, {vLane}")
        a(f"v_mul_u32_u24 v{t[0]}, {E1_STRIDE}, v{t[0]}")
        a(f"v_and_b32 v{t[1]}, 31, {vLane}")
        a(f"v_lshlrev_b32 v{t[1]}, 4, v{t[1]}")
        a(f"v_add_u32 v{t[0]}, v{t[0]}, v{t[1]}")
        for p in range(4):
            hh = p >> 1; b = p & 1
            a(f"s_add_u32 {sT[2+p]}, {sT[0]}, {(b*128 + hh*4) * E1_STRIDE}")
        a(f"s_mov_b32 {sCnt}, 0")
        a.label("L_s1_data")
        D0 = 16
        for p in range(4):
            for k in range(2):
                r = D0 + 8 * p + 4 * k
                a(f"buffer_load_dwordx4 v[{r}:{r+3}], v{t[0]}, {SRD_E}, {sT[2+p]} offen offset:{2*k*E1_STRIDE} sc1")
        a(f"v_max_f32_dpp v10, v8, v8 quad_perm:[1,0,3,2] row_mask:0xf bank_mask:0xf")
        a(f"v_max_f32_dpp v10, v10, v10 quad_perm:[2,3,0,1] row_mask:0xf bank_mask:0xf")
        a(f"v_sub_f32 v10, v8, v10")
        a(f"v_mul_f32 v10, {LOG2E:#x}, v10")
        a(f"v_exp_f32 v10, v10")
        a(f"v_mul_f32 v11, v10, v9")
        a(f"v_add_f32_dpp v11, v11, v11 quad_perm:[1,0,3,2] row_mask:0xf bank_mask:0xf")
        a(f"v_add_f32_dpp v11, v11, v11 quad_perm:[2,3,0,1] row_mask:0xf bank_mask:0xf")
        a(f"v_rcp_f32 v11, v11")
        a(f"v_mul_f32 v12, v10, v11")
        a(f"v_mov_b32 v13, v12")
        a(f"v_mov_b32_dpp v13, v12 quad_perm:[1,1,3,3] row_mask:0xc bank_mask:0xf")
        a("s_waitcnt vmcnt(0)")
        self.sentinel_check(range(D0, D0 + 32), t[1], "L_s1_data")
        self.stamp(9)
        for p in range(4):
            for e in range(4):
                r0 = D0 + 8 * p + e; r1 = r0 + 4
                a(f"v_mul_f32_dpp v{r0}, v13, v{r0} row_newbcast:{4*p} row_mask:0xf bank_mask:0xf")
                a(f"v_fmac_f32_dpp v{r0}, v13, v{r1} row_newbcast:{4*p+2} row_mask:0xf bank_mask:0xf")
        for hh in range(2):
            for e in range(4):
                ra = D0 + 8 * (2 * hh) + e; rb = D0 + 8 * (2 * hh + 1) + e
                a(f"v_permlane32_swap_b32 v{ra}, v{rb}")
                a(f"v_add_f32 v{ra}, v{ra}, v{rb}")
            ra = D0 + 16 * hh
            a(f"v_cvt_pk_bf16_f32 v{ra}, v{ra}, v{ra+1}")
            a(f"v_cvt_pk_bf16_f32 v{ra+1}, v{ra+2}, v{ra+3}")
        a(f"v_lshrrev_b32 v{t[0]}, 5, {vLane}")
        a(f"v_lshlrev_b32 v{t[0]}, 11, v{t[0]}")
        a(f"v_and_b32 v{t[1]}, 31, {vLane}")
        a(f"v_lshlrev_b32 v{t[1]}, 3, v{t[1]}")
        a(f"v_add_u32 v{t[0]}, v{t[0]}, v{t[1]}")
        a(f"s_lshl_b32 {sT[1]}, {sWave}, 9")
        a(f"v_add_u32 v{t[0]}, {sT[1]}, v{t[0]}")
        a(f"ds_write_b64 v{t[0]}, v[{D0}:{D0+1}] offset:{VEC_S1}")
        a(f"ds_write_b64 v{t[0]}, v[{D0+16}:{D0+17}] offset:{VEC_S1+256}")
        self.dbg([D0, D0 + 1, D0 + 16, D0 + 17], 20)
        vA = t[2]; vB = t[3]
        self.gemv_addr(vA, vB, 2048, 32)
        a(f"v_add_u32 v{vA}, {sT[1]}, v{vA}")
        a(f"s_lshl_b32 {sT[2]}, {sWave}, 13")
        a(f"v_add_u32 v{vB}, {sT[2]}, v{vB}")
        a("s_waitcnt lgkmcnt(0)")
        self.gemv(vA, VEC_S1, 64, vB, WO_OFF, 1024, 128, 8, 8, R0=16)
        a(f"s_lshl_b32 {sT[1]}, {sWave}, 7")
        a(f"v_lshlrev_b32 v{t[0]}, 2, {vLane}")
        a(f"v_add_u32 v{t[1]}, {sT[1]}, v{t[0]}")
        a("s_mov_b64 exec, 0xffffffff")
        a(f"ds_write_b32 v{t[1]}, v8 offset:{RED}")
        a("s_mov_b64 exec, -1")
        a("s_waitcnt lgkmcnt(0)")
        a("s_barrier")
        a(f"s_cmp_lg_u32 {sWave}, 3")
        a("s_cbranch_scc1 L_s1_done")
        for w in range(4):
            a(f"ds_read_b32 v{8+w}, v{t[0]} offset:{RED+128*w}")
        a("s_waitcnt lgkmcnt(0)")
        a("v_add_f32 v8, v8, v9"); a("v_add_f32 v10, v10, v11"); a("v_add_f32 v8, v8, v10")
        a(f"s_mul_i32 {sT[0]}, {sS1kg}, 40")
        a(f"s_add_u32 {sT[0]}, {sT[0]}, {sS1cg}")
        a(f"s_lshl_b32 {sT[0]}, {sT[0]}, 7")
        a(f"s_mul_i32 {sT[1]}, {sLay}, {E2_L}")
        a(f"s_add_u32 {sT[0]}, {sT[0]}, {sT[1]}")
        a(f"s_add_u32 {sT[0]}, {sT[0]}, {E2}")
        a("s_mov_b64 exec, 0xffffffff")
        a(f"buffer_store_dword v8, v{t[0]}, {SRD_E}, {sT[0]} offen sc1")
        a("s_mov_b64 exec, -1")
        self.dbg([8], 24)
        self.stamp(10)
        a.label("L_s1_done")

    def s2(self):
        a = self.a; c = self.c; t = vT
        a(f"s_mul_i32 {sT[0]}, {sWave}, 80")
        a(f"v_add_u32 v{t[0]}, {sT[0]}, {vLane}")
        a(f"v_and_b32 v{t[1]}, 15, {vLane}")
        a(f"v_add_u32 v{t[1]}, {sT[0]}, v{t[1]}")
        a(f"v_add_u32 v{t[1]}, 64, v{t[1]}")
        a(f"v_lshlrev_b32 v{t[2]}, 4, v{t[0]}")
        a(f"v_lshlrev_b32 v{t[3]}, 4, v{t[1]}")
        a(f"s_mul_i32 {sT[1]}, {sLay}, {E2_L}")
        a(f"s_add_u32 {sT[1]}, {sT[1]}, {E2}")
        for kg in range(4):
            a(f"s_add_u32 {sT[2+kg]}, {sT[1]}, {kg*5120}")
        a(f"s_mov_b32 {sCnt}, 0")
        a.label("L_s2_poll")
        for kg in range(4):
            a(f"buffer_load_dwordx4 v[{8+8*kg}:{11+8*kg}], v{t[2]}, {SRD_E}, {sT[2+kg]} offen sc1")
            a(f"buffer_load_dwordx4 v[{12+8*kg}:{15+8*kg}], v{t[3]}, {SRD_E}, {sT[2+kg]} offen sc1")
        for (q, d) in ((t[0], t[4]), (t[1], t[5])):
            a(f"v_bfe_u32 v{d}, v{q}, 2, 1")
            a(f"v_mul_u32_u24 v{d}, 1280, v{d}")
            a(f"v_lshrrev_b32 v{t[6]}, 3, v{q}")
            a(f"v_lshlrev_b32 v{t[6]}, 5, v{t[6]}")
            a(f"v_add_u32 v{d}, v{d}, v{t[6]}")
            a(f"v_and_b32 v{t[6]}, 3, v{q}")
            a(f"v_lshlrev_b32 v{t[6]}, 3, v{t[6]}")
            a(f"v_add_u32 v{d}, v{d}, v{t[6]}")
        a(f"ds_read_b64 v[40:41], v{t[4]} offset:{XRES}")
        a(f"ds_read_b64 v[42:43], v{t[5]} offset:{XRES}")
        a("s_waitcnt vmcnt(0) lgkmcnt(0)")
        self.sentinel_check(range(8, 40), t[6], "L_s2_poll")
        self.stamp(11)
        for e in range(8):
            a(f"v_add_f32 v{8+e}, v{8+e}, v{16+e}")
            a(f"v_add_f32 v{24+e}, v{24+e}, v{32+e}")
            a(f"v_add_f32 v{8+e}, v{8+e}, v{24+e}")
        for h in range(2):
            s = 8 + 4 * h; x = 40 + 2 * h
            a(f"v_cvt_pk_bf16_f32 v44, v{s}, v{s+1}")
            a(f"v_cvt_pk_bf16_f32 v45, v{s+2}, v{s+3}")
            for k in range(2):
                a(f"v_lshlrev_b32 v{s+2*k}, 16, v{44+k}")
                a(f"v_and_b32 v{s+2*k+1}, 0xffff0000, v{44+k}")
                a(f"v_lshlrev_b32 v46, 16, v{x+k}")
                a(f"v_and_b32 v47, 0xffff0000, v{x+k}")
                a(f"v_add_f32 v{s+2*k}, v{s+2*k}, v46")
                a(f"v_add_f32 v{s+2*k+1}, v{s+2*k+1}, v47")
                a(f"v_cvt_pk_bf16_f32 v{x+k}, v{s+2*k}, v{s+2*k+1}")
        a(f"ds_write_b64 v{t[4]}, v[40:41] offset:{LNB}")
        a(f"ds_write_b64 v{t[5]}, v[42:43] offset:{LNB}")
        a("s_waitcnt lgkmcnt(0)")
        a("s_barrier")
        a(f"s_cmp_lg_u32 {sWave}, 3")
        a("s_cbranch_scc1 L_idle")
        self.ln_lds_addr(t[2])
        for i in range(3):
            a(f"ds_read_b128 v[{16+4*i}:{19+4*i}], v{t[2]} offset:{LNB+512*i}")
        a("s_waitcnt lgkmcnt(0)")
        self.dbg(list(range(16, 28)), 26)
        a(f"s_mov_b32 {sWB}, {W1_OFF}")
        a(f"s_mov_b32 {sCaller}, 1")
        a("s_branch L_lngemv")

    def s2_epi(self):
        a = self.a; t = vT
        a.label("L_s2_epi")
        self.bf16r(28, 28)
        a(f"v_mul_f32 v29, {0x80000000 | LOG2E:#x}, v28")
        a("v_exp_f32 v29, v29")
        a("v_add_f32 v29, 1.0, v29")
        a("v_rcp_f32 v29, v29")
        a("v_mul_f32 v28, v28, v29")
        self.dbg([28], 38)
        self.pack_pairs(t[0], 28, t[1])
        a(f"s_mul_i32 {sT[0]}, {sLay}, {E3_L}")
        a(f"s_lshl_b32 {sT[1]}, {sS2j}, 7")
        a(f"s_add_u32 {sT[0]}, {sT[0]}, {sT[1]}")
        a(f"s_add_u32 {sT[0]}, {sT[0]}, {E3}")
        a(f"v_lshrrev_b32 v{t[2]}, 4, {vLane}")
        a(f"v_lshlrev_b32 v{t[2]}, 5, v{t[2]}")
        a(f"v_and_b32 v{t[3]}, 15, {vLane}")
        a(f"v_lshlrev_b32 v{t[3]}, 1, v{t[3]}")
        a(f"v_add_u32 v{t[2]}, v{t[2]}, v{t[3]}")
        a("s_mov_b64 exec, 0x55555555")
        a(f"buffer_store_dword v{t[0]}, v{t[2]}, {SRD_E}, {sT[0]} offen sc1")
        a("s_mov_b64 exec, -1")
        self.stamp(12)
        a("s_branch L_after_s12")

    def s3(self):
        a = self.a; c = self.c; t = vT
        a(f"v_lshrrev_b32 v{t[0]}, 5, {vLane}")
        a(f"v_lshlrev_b32 v{t[0]}, 1, v{t[0]}")
        a(f"v_bfe_u32 v{t[1]}, {vLane}, 3, 1")
        a(f"v_add_u32 v{t[0]}, v{t[0]}, v{t[1]}")
        a(f"v_mul_u32_u24 v{t[0]}, 5120, v{t[0]}")
        a(f"v_bfe_u32 v{t[1]}, {vLane}, 4, 1")
        a(f"v_lshlrev_b32 v{t[2]}, 6, v{t[1]}")
        a(f"v_add_u32 v{t[0]}, v{t[0]}, v{t[2]}")
        a(f"v_and_b32 v{t[2]}, 7, {vLane}")
        a(f"v_lshlrev_b32 v{t[3]}, 2, v{t[2]}")
        a(f"v_add_u32 v{t[0]}, v{t[0]}, v{t[3]}")
        a(f"s_lshr_b32 {sT[0]}, {sS3j}, 1")
        a(f"s_lshl_b32 {sT[0]}, {sT[0]}, 7")
        a(f"s_and_b32 {sT[1]}, {sS3j}, 1")
        a(f"s_lshl_b32 {sT[1]}, {sT[1]}, 5")
        a(f"s_add_u32 {sT[0]}, {sT[0]}, {sT[1]}")
        a(f"s_mul_i32 {sT[1]}, {sLay}, {E2_L}")
        a(f"s_add_u32 {sT[0]}, {sT[0]}, {sT[1]}")
        a(f"s_add_u32 {sT[0]}, {sT[0]}, {E2}")
        a(f"v_mul_u32_u24 v{t[1]}, 1280, v{t[1]}")
        a(f"v_lshlrev_b32 v{t[2]}, 1, v{t[2]}")
        a(f"v_add_u32 v{t[1]}, v{t[1]}, v{t[2]}")
        a(f"s_lshl_b32 {sT[1]}, {sS3j}, 4")
        a(f"v_add_u32 v{t[1]}, {sT[1]}, v{t[1]}")
        a(f"ds_read_u16 v9, v{t[1]} offset:{XRES}")
        a(f"s_mov_b32 {sCnt}, 0")
        a.label("L_s3_x1")
        a(f"buffer_load_dword v8, v{t[0]}, {SRD_E}, {sT[0]} offen sc1")
        a("s_waitcnt vmcnt(0) lgkmcnt(0)")
        self.sentinel_check([8], t[2], "L_s3_x1")
        self.stamp(13)
        a("v_add_f32_dpp v8, v8, v8 row_ror:8 row_mask:0xf bank_mask:0xf")
        a(f"v_mov_b32 v10, v8")
        a("v_permlane32_swap_b32 v8, v10")
        a("v_add_f32 v8, v8, v10")
        self.bf16r(8, 8)
        a("v_lshlrev_b32 v9, 16, v9")
        a("v_add_f32 v8, v8, v9")
        self.bf16r(52, 8)
        a(f"v_mov_b32 v53, v{t[1]}")
        a(f"v_lshrrev_b32 v{t[0]}, 2, {vLane}")
        a(f"v_lshlrev_b32 v{t[0]}, 7, v{t[0]}")
        a(f"v_and_b32 v{t[1]}, 3, {vLane}")
        a(f"v_lshlrev_b32 v{t[1]}, 4, v{t[1]}")
        a(f"v_add_u32 v{t[0]}, v{t[0]}, v{t[1]}")
        a(f"v_mov_b32 v{t[2]}, v{t[0]}")
        a("s_mov_b64 exec, 0xffff000000000000")
        a(f"v_subrev_u32 v{t[2]}, {4*128}, v{t[0]}")
        a("s_mov_b64 exec, -1")
        a(f"s_mul_i32 {sT[0]}, {sLay}, {E3_L}")
        a(f"s_add_u32 {sT[0]}, {sT[0]}, {E3}")
        for i in range(7): a(f"s_add_u32 {sT[1+i]}, {sT[0]}, {2048*i}")
        a(f"s_mov_b32 {sCnt}, 0")
        a.label("L_s3_h")
        for i in range(7):
            va = t[0] if i < 6 else t[2]
            a(f"buffer_load_dwordx4 v[{8+4*i}:{11+4*i}], v{va}, {SRD_E}, {sT[1+i]} offen sc1")
        a("s_waitcnt vmcnt(0)")
        self.sentinel_check(range(8, 36), t[3], "L_s3_h")
        self.stamp(14)
        a(f"v_bfe_u32 v{t[3]}, {vLane}, 1, 1")
        a(f"v_mul_u32_u24 v{t[3]}, 3456, v{t[3]}")
        a(f"v_and_b32 v{t[4]}, 1, {vLane}")
        a(f"v_lshlrev_b32 v{t[4]}, 4, v{t[4]}")
        a(f"v_add_u32 v{t[3]}, v{t[3]}, v{t[4]}")
        a(f"v_lshrrev_b32 v{t[4]}, 2, {vLane}")
        a(f"v_lshlrev_b32 v{t[4]}, 5, v{t[4]}")
        a(f"v_add_u32 v{t[3]}, v{t[3]}, v{t[4]}")
        for i in range(6):
            a(f"ds_write_b128 v{t[3]}, v[{8+4*i}:{11+4*i}] offset:{VEC_S3 + 512*i}")
        a("s_mov_b64 exec, 0xffffffffffff")
        a(f"ds_write_b128 v{t[3]}, v[32:35] offset:{VEC_S3 + 512*6}")
        a("s_mov_b64 exec, -1")
        vA = t[0]; vB = t[1]
        a(f"v_bfe_u32 v{vA}, {vLane}, 2, 1")
        a(f"v_mul_u32_u24 v{vA}, 3456, v{vA}")
        a(f"v_and_b32 v{t[4]}, 1, {vLane}")
        a(f"v_mul_u32_u24 v{t[4]}, 1728, v{t[4]}")
        a(f"v_add_u32 v{vA}, v{vA}, v{t[4]}")
        a(f"v_lshrrev_b32 v{t[4]}, 4, {vLane}")
        a(f"v_lshlrev_b32 v{t[5]}, 4, v{t[4]}")
        a(f"v_add_u32 v{vA}, v{vA}, v{t[5]}")
        a(f"v_lshlrev_b32 v{vB}, 3, v{t[4]}")
        a(f"v_bfe_u32 v{t[5]}, {vLane}, 2, 2")
        a(f"v_add_u32 v{vB}, v{vB}, v{t[5]}")
        a(f"v_bfe_u32 v{t[5]}, {vLane}, 1, 1")
        a(f"v_mul_u32_u24 v{t[5]}, 864, v{t[5]}")
        a(f"v_add_u32 v{vB}, v{vB}, v{t[5]}")
        a(f"v_lshlrev_b32 v{vB}, 4, v{vB}")
        a(f"v_and_b32 v{t[5]}, 1, {vLane}")
        a(f"v_lshlrev_b32 v{t[5]}, 3, v{t[5]}")
        a(f"v_add_u32 v{vB}, v{vB}, v{t[5]}")
        a("s_waitcnt lgkmcnt(0)")
        self.gemv(vA, VEC_S3, 64, vB, W2_OFF, 512, 64, 27, 8, R0=16)
        a("v_add_f32_dpp v8, v9, v8 row_ror:8 row_mask:0xf bank_mask:0x3")
        self.bf16r(8, 8)
        a("v_add_f32 v8, v8, v52")
        self.dbg([8], 39)
        self.pack_pairs(t[0], 8, t[1])
        a("s_mov_b64 exec, 0x00550055")
        a(f"s_cmp_eq_u32 {sPhase}, 2")
        a("s_cbranch_scc1 L_s3_final")
        a(f"v_lshrrev_b32 v{t[2]}, 4, {vLane}")
        a(f"v_lshlrev_b32 v{t[2]}, 4, v{t[2]}")
        a(f"v_and_b32 v{t[3]}, 7, {vLane}")
        a(f"v_lshlrev_b32 v{t[3]}, 1, v{t[3]}")
        a(f"v_add_u32 v{t[2]}, v{t[2]}, v{t[3]}")
        a(f"s_lshl_b32 {sT[0]}, {sS3j}, 7")
        a(f"s_add_u32 {sT[0]}, {sT[0]}, {E4}")
        a(f"buffer_store_dword v{t[0]}, v{t[2]}, {SRD_E}, {sT[0]} offen sc1")
        a("s_mov_b64 exec, -1")
        a("s_branch L_s3_done")
        a.label("L_s3_final")
        self.srd(SRD_W, pOUT, 2560)
        a(f"buffer_store_dword v{t[0]}, v53, {SRD_W}, 0 offen")
        a("s_mov_b64 exec, -1")
        a.label("L_s3_done")
        self.stamp(15)

    def build(self):
        a = self.a; c = self.c
        self.plan(); self.assign_first()
        hdr = open("interleave_layers__gqa_block_cached__dense_activation_silu__decode.s.ref").read().split("\n")
        head = [l for l in hdr if l.startswith(";") and "@launch" not in l and l.startswith("; ")][:0]
        a(f"; @launch grid=(256,1,1) block=(256,1,1) lds={LDS_TOTAL}")
        a('.amdgcn_target "amdgcn-amd-amdhsa--gfx950"')
        a(".text")
        a(f".globl {NAME}")
        a(".p2align 8")
        a(f".type {NAME},@function")
        a.label(NAME)
        self.prologue()
        self.s4()
        self.run_pass(1)
        self.run_pass(2)
        self.chain()
        self.s2_epi()
        a.label("L_fin")
        self.stamp(19)
        self.stamp_flush()
        a.label("L_end")
        a("s_endpgm")
        a('.section .rodata,"a"')
        a(".p2align 6")
        a(f".amdhsa_kernel {NAME}")
        a("  .amdhsa_next_free_vgpr 512".strip())
        for l in (".amdhsa_next_free_sgpr 102", ".amdhsa_accum_offset 256", ".amdhsa_group_segment_fixed_size 0",
                  ".amdhsa_kernarg_size 88", ".amdhsa_user_sgpr_count 2", ".amdhsa_user_sgpr_kernarg_segment_ptr 1",
                  ".amdhsa_system_sgpr_workgroup_id_x 1"):
            a(l)
        a(".end_amdhsa_kernel")
        return a.finish()

if __name__ == "__main__":
    ap = argparse.ArgumentParser()
    ap.add_argument("-o", default="interleave_layers__gqa_block_cached__dense_activation_silu__decode.s")
    ap.add_argument("--nR", type=int, default=0)
    ap.add_argument("--nLds", type=int, default=0)
    ap.add_argument("--debug", action="store_true")
    ap.add_argument("--dbgphase", type=int, default=0)
    ap.add_argument("--prof", action="store_true")
    ap.add_argument("--kv", default="nt")
    ap.add_argument("--wf", default="")
    ap.add_argument("--rotmul", type=int, default=5)
    ap.add_argument("--window", type=int, default=63)
    ap.add_argument("--first", type=int, default=1000)
    ap.add_argument("--depth0", type=int, default=16)
    args = ap.parse_args()
    c = Cfg()
    c.nR = args.nR; c.nLds = args.nLds; c.debug = args.debug; c.kv_flags = args.kv; c.w_flags = args.wf
    c.dbg_phase = args.dbgphase; c.prof = args.prof; c.rotmul = args.rotmul; c.window = args.window; c.first = args.first; c.depth0 = args.depth0
    k = K(c)
    txt = k.build()
    open(args.o, "w").write(txt)
    print("wrote", args.o, len(txt), "bytes;", txt.count("\n"), "lines; nops inserted:", k.a.nnop)
```

```python
import sys, argparse
from asmlib import Asm

NAME = "interleave_layers__gqa_block_cached__dense_activation_silu__decode_kernel"

class Cfg:
    window = 12
    pace = 300.0
    kv = "nt"
    wf = "nt"
    prof = False
    spin = 60000
    pcnt = 64
    pq1 = 92
    pq2 = 68
    npre = 0
    rotmul = 5
    v1regcap = 32
    pcnt2 = 140
    pq1b = 4
    dp = 0
    kp = 1
    dp1 = 0
    kp1 = 1
    dps = 0
    kps = 1
    wq0 = 8
    w1st = 8
    w2nd = 50

E1O = 0;                 E1O_H = 28 * 512;  E1O_I = 32 * E1O_H
E1M = E1O + 4 * E1O_I;   E1M_I = 32 * 256
E2 = E1M + 4 * E1M_I;    E2_I = 32 * 2560
E5Q = E2 + 4 * E2_I;     E5Q_I = 32 * 256
MISC = E5Q + 4 * E5Q_I
E3X = MISC;              E3X_I = 1280
E3H = E3X + 4 * E3X_I;   E3H_I = 3584
E4X = E3H + 4 * E3H_I;   E4X_I = 1280
assert E4X + 2 * E4X_I <= MISC + 32768
E_SIZE = MISC + 32768
DBG_OFF = 4 << 20
LDS_TOTAL = 163840

LOG2E = 0x3fb8aa3b
SCALE = 0x3db504f3

pX = (40, 41); pK = (42, 43); pV = (44, 45); pWQ = (46, 47); pWO = (48, 49); pW1 = (52, 53); pW2 = (54, 55)
pOUT = (56, 57); pDBG = (58, 59); pWS = (60, 61)
sW = "s2"; sWave = "s3"
SRD_E = "s[24:27]"
SRD_D = "s[92:95]"
sCnt = "s73"
sT = [f"s{i}" for i in range(74, 90)]

def vr(b, n=1): return f"v{b}" if n == 1 else f"v[{b}:{b+n-1}]"

class Cell:
    def __init__(self, kind, base): self.kind = kind; self.base = base
    def reg(self): return f"{self.kind}[{self.base}:{self.base+3}]"
    def __repr__(self): return f"{self.kind}{self.base}"

class G:
    def __init__(self, cfg):
        self.c = cfg
        self.a = Asm()

    def bf16r(self, dst, src):
        a = self.a
        a(f"v_cvt_pk_bf16_f32 v{dst}, v{src}, v{src}")
        a(f"v_and_b32 v{dst}, 0xffff0000, v{dst}")

    def red_rows(self, v, t, op):
        a = self.a
        a(f"v_mov_b32 v{t}, v{v}")
        a(f"v_permlane16_swap_b32 v{v}, v{t}")
        a(f"{op} v{v}, v{v}, v{t}")
        a(f"v_mov_b32 v{t}, v{v}")
        a(f"v_permlane32_swap_b32 v{v}, v{t}")
        a(f"{op} v{v}, v{v}, v{t}")

    def red_all(self, v, t, op):
        a = self.a
        for ctl in ("quad_perm:[1,0,3,2]", "quad_perm:[2,3,0,1]", "row_ror:4", "row_ror:8"):
            a(f"{op}_dpp v{v}, v{v}, v{v} {ctl} row_mask:0xf bank_mask:0xf")
        self.red_rows(v, t, op)

    def red_hi(self, v, t, op):
        self.a(f"{op}_dpp v{v}, v{v}, v{v} row_ror:8 row_mask:0xf bank_mask:0xf")
        self.red_rows(v, t, op)

    def sent_cmp(self, regs, t):
        a = self.a
        regs = list(regs)
        if len(regs) == 1:
            a(f"v_cmp_eq_u32 vcc, -1, v{regs[0]}")
        else:
            if len(regs) == 2:
                a(f"v_max_u32 v{t}, v{regs[0]}, v{regs[1]}"); k = 2
            else:
                a(f"v_max3_u32 v{t}, v{regs[0]}, v{regs[1]}, v{regs[2]}"); k = 3
            while k + 1 < len(regs):
                a(f"v_max3_u32 v{t}, v{t}, v{regs[k]}, v{regs[k+1]}"); k += 2
            if k < len(regs):
                a(f"v_max_u32 v{t}, v{t}, v{regs[k]}")
            a(f"v_cmp_eq_u32 vcc, -1, v{t}")

    def sent_loop(self, regs, t, lab_retry):
        a = self.a
        self.sent_cmp(regs, t)
        done = a.newlabel("L_pd")
        a(f"s_add_u32 {sCnt}, {sCnt}, 1")
        a(f"s_cmp_gt_u32 {sCnt}, {self.c.spin}")
        a(f"s_cbranch_scc1 {done}")
        a(f"s_cbranch_vccnz {lab_retry}")
        a.label(done)

    def poll(self, regs, issue, n, d, K, t):
        a = self.a
        regs = list(regs)
        for r in regs: a(f"v_mov_b32 v{r}, -1")
        a(f"s_mov_b32 {sCnt}, 0")
        lab = a.newlabel("L_pl")
        a.label(lab)
        issue()
        if d: a(f"s_sleep {d}")
        a(f"s_waitcnt vmcnt({(K - 1) * n})")
        self.sent_loop(regs, t, lab)

    def cnt_wait(self, off, target, t):
        a = self.a
        lp = a.newlabel("L_cw"); ok = a.newlabel("L_cwd")
        a(f"s_mov_b32 {sCnt}, 0")
        a.label(lp)
        a(f"v_mov_b32 v{t}, 0")
        a(f"global_load_dword v{t}, v{t}, s[{pDBG[0]}:{pDBG[1]}] offset:{off} sc1")
        a("s_waitcnt vmcnt(0)")
        a(f"v_cmp_gt_u32 vcc, {target}, v{t}" if target <= 64 else f"v_cmp_gt_u32 vcc, {sT[15]}, v{t}")
        a(f"s_add_u32 {sCnt}, {sCnt}, 1")
        a(f"s_cmp_gt_u32 {sCnt}, {self.c.spin}")
        a(f"s_cbranch_scc1 {ok}")
        a(f"s_cbranch_vccnz {lp}")
        a.label(ok)

    def srd(self, b, ptr, nbytes):
        a = self.a
        a(f"s_mov_b32 s{b}, s{ptr[0]}")
        a(f"s_mov_b32 s{b+1}, s{ptr[1]}")
        a(f"s_mov_b32 s{b+2}, {nbytes}")
        a(f"s_mov_b32 s{b+3}, 0x20000")

    def stamp(self, slot, sbase=None):
        if not self.c.prof: return
        a = self.a
        a("s_memrealtime s[98:99]")
        if sbase is None:
            a(f"s_mov_b32 m0, {slot}")
        else:
            a(f"s_add_u32 m0, {sbase}, {slot}")
        a("s_waitcnt lgkmcnt(0)")
        a(f"v_writelane_b32 v{self.vprof}, s98, m0")

    def stampv(self, slot, sreg):
        if not self.c.prof: return
        self.a(f"s_mov_b32 m0, {slot}")
        self.a(f"v_writelane_b32 v{self.vprof}, {sreg}, m0")

    def stamp_flush(self):
        if not self.c.prof: return
        a = self.a
        a(f"s_add_u32 s92, s{pWS[0]}, {DBG_OFF}")
        a(f"s_addc_u32 s93, s{pWS[1]}, 0")
        a(f"s_mov_b32 s94, {1024*256}")
        a("s_mov_b32 s95, 0x20000")
        a(f"s_lshl_b32 s96, {sW}, 2")
        a(f"s_add_u32 s96, s96, {sWave}")
        a(f"s_lshl_b32 s96, s96, 8")
        a(f"v_mbcnt_lo_u32_b32 v63, -1, 0")
        a(f"v_mbcnt_hi_u32_b32 v63, -1, v63")
        a(f"v_lshlrev_b32 v63, 2, v63")
        a(f"buffer_store_dword v{self.vprof}, v63, {SRD_D}, s96 offen")
        a("s_waitcnt vmcnt(0)")

    def streamer(self):
        a = self.a; c = self.c
        self.vprof = 255
        vLds = 0; vOffK = 1; vOffV = 2; vOffV2 = 3
        vM = [4, 5, 6, 7]
        vQ = [8, 16]
        vS = [24, 29]
        vMx = [34, 36]; vL = [35, 37]
        t0, t1 = 38, 39
        vO1 = 40; vO = 44; vD = 48; vTmp = 56
        SRDK = ["s[8:11]", "s[16:19]"]; SRDV = ["s[12:15]", "s[20:23]"]
        def sOff(slot, b): return f"s{28+slot}" if slot < 9 else f"s{37+b}"
        sH = "s62"; sWv = "s63"; sMask = ["s[64:65]", "s[66:67]"]
        sLdsB = "s68"; sE1O = "s69"; sE1M = "s70"; sQ = "s71"
        a("; ================= streamer =================")
        a.label("L_stream")
        a(f"s_and_b32 {sH}, {sW}, 31")
        a(f"s_lshr_b32 {sT[0]}, {sW}, 5")
        a(f"s_lshl_b32 {sWv}, {sT[0]}, 2")
        a(f"s_add_u32 {sWv}, {sWv}, {sWave}")
        a(f"v_lshlrev_b32 v{vOffV}, 4, v0")
        a(f"v_and_b32 v{t0}, 7, v0")
        a(f"v_lshlrev_b32 v{vOffK}, 10, v{t0}")
        a(f"v_bfe_u32 v{t0}, v0, 3, 1")
        a(f"v_lshlrev_b32 v{t0}, 6, v{t0}")
        a(f"v_add_u32 v{vOffK}, v{vOffK}, v{t0}")
        a(f"v_lshrrev_b32 v{t0}, 4, v0")
        a(f"v_lshlrev_b32 v{t0}, 4, v{t0}")
        a(f"v_add_u32 v{vOffK}, v{vOffK}, v{t0}")
        a(f"v_add_u32 v{vOffV2}, 4096, v{vOffV}")
        a(f"s_mul_i32 {sT[1]}, {sW}, {c.rotmul}")
        a(f"s_add_u32 {sT[1]}, {sT[1]}, {sWave}")
        a(f"s_mul_i32 {sT[2]}, {sT[1]}, 7282")
        a(f"s_lshr_b32 {sT[2]}, {sT[2]}, 16")
        a(f"s_mul_i32 {sT[2]}, {sT[2]}, 9")
        a(f"s_sub_u32 {sT[1]}, {sT[1]}, {sT[2]}")
        a(f"s_mul_i32 {sT[3]}, {sWv}, 9")
        for s in range(9):
            a(f"s_add_u32 {sT[2]}, {sT[1]}, {s}")
            a(f"s_cmp_ge_u32 {sT[2]}, 9")
            a(f"s_cselect_b32 {sT[4]}, 9, 0")
            a(f"s_sub_u32 {sT[2]}, {sT[2]}, {sT[4]}")
            a(f"s_add_u32 {sT[2]}, {sT[2]}, {sT[3]}")
            a(f"s_lshl_b32 s{28+s}, {sT[2]}, 13")
        a(f"s_cmp_lt_u32 {sT[0]}, 4")
        a(f"s_cselect_b32 {sT[1]}, 1, 0")
        a(f"s_cmp_eq_u32 {sWave}, 0")
        a(f"s_cselect_b32 {sT[1]}, {sT[1]}, 0")
        a(f"s_add_u32 {sT[2]}, {sT[0]}, 252")
        a(f"s_lshl_b32 {sT[2]}, {sT[2]}, 13")
        a(f"s_cmp_eq_u32 {sT[1]}, 1")
        a(f"s_cselect_b32 s37, {sT[2]}, 0x200000")
        a(f"s_cselect_b32 s64, 0, 0xff00ff00")
        a(f"s_cselect_b32 s65, 0, 0xff00ff00")
        a(f"s_cmp_ge_u32 {sT[0]}, 3")
        a(f"s_cselect_b32 {sT[1]}, 1, 0")
        a(f"s_cmp_eq_u32 {sWave}, 1")
        a(f"s_cselect_b32 {sT[1]}, {sT[1]}, 0")
        a(f"s_add_u32 {sT[2]}, {sT[0]}, 249")
        a(f"s_lshl_b32 {sT[2]}, {sT[2]}, 13")
        a(f"s_cmp_eq_u32 {sT[1]}, 1")
        a(f"s_cselect_b32 s38, {sT[2]}, 0x200000")
        a(f"s_cselect_b32 s66, 0, 0xff00ff00")
        a(f"s_cselect_b32 s67, 0, 0xff00ff00")
        a(f"s_mul_i32 {sLdsB}, {sWave}, 40960")
        a(f"s_lshl_b32 {sT[5]}, {sH}, 21")
        a("s_waitcnt lgkmcnt(0)")
        for b in range(2):
            for base, p in ((8 + 8 * b, pK), (12 + 8 * b, pV)):
                if b == 0:
                    a(f"s_add_u32 s{base}, s{p[0]}, {sT[5]}")
                else:
                    a(f"s_add_u32 {sT[6]}, {sT[5]}, {64 << 20}")
                    a(f"s_add_u32 s{base}, s{p[0]}, {sT[6]}")
                a(f"s_addc_u32 s{base+1}, s{p[1]}, 0")
                a(f"s_mov_b32 s{base+2}, 0x200000")
                a(f"s_mov_b32 s{base+3}, 0x20000")
        self.srd(24, pWS, E_SIZE)
        a(f"s_mul_i32 {sE1O}, {sH}, {E1O_H}")
        a(f"s_lshl_b32 {sT[0]}, {sWv}, 9")
        a(f"s_add_u32 {sE1O}, {sE1O}, {sT[0]}")
        if E1O: a(f"s_add_u32 {sE1O}, {sE1O}, {E1O}")
        self.stamp(1)

        def kl(b, slots):
            return [dict(kind="K", b=b, slot=s, g=g, hf=hf, cell=None, keep=False) for s in slots for g in range(4) for hf in range(2)]
        def vl(b, slots):
            return [dict(kind="V", b=b, slot=s, q=q, cell=None, keep=False, lds=False) for s in slots for q in range(8)]
        K0 = kl(0, range(10)); V0 = vl(0, range(10)); K1 = kl(1, range(10)); V1 = vl(1, range(10))
        for ld in K0: ld["keep"] = 1 <= ld["slot"] <= 8
        for ld in V0:
            ld["keep"] = ld["slot"] <= 8; ld["lds"] = ld["slot"] <= 8
        K0n = kl(0, [0, 9]); V0n = vl(0, [9])
        npre = c.npre
        V1m = [ld for ld in V1 if ld["slot"] <= 8]; V1x = [ld for ld in V1 if ld["slot"] == 9]
        V1pre = V1m[:npre]; V1rest = V1m[npre:]
        for ld in V1rest:
            ld["keep"] = True; ld["lds"] = True; ld["cap"] = True
        V1pre2 = [dict(ld, cell=None) for ld in V1pre]
        V1x2 = vl(1, [9])
        K1p = kl(1, range(10))
        for ld in K1p: ld["keep"] = False
        CNT = dict(kind="CNT"); CHK = dict(kind="CNTCHK")
        Q1 = dict(kind="Q", lay=0, bs=[0]); Q1b = dict(kind="Q", lay=0, bs=[1]); Q2 = dict(kind="Q", lay=1, bs=[0])
        CNT2 = dict(kind="CNT2")
        first = K0 + V0
        W = c.window
        issue = first[:c.pcnt] + [CNT] + first[c.pcnt:c.pq1 - 2] + [CHK] + first[c.pq1 - 2:c.pq1] + [Q1] + first[c.pq1:c.pcnt2] + [CNT2] + first[c.pcnt2:]
        issue += K1[:c.pq1b] + [Q1b] + K1[c.pq1b:c.pq2] + [Q2] + K1[c.pq2:] + V1pre + K0n + V0n + V1rest + V1x + K1p + V1pre2 + V1x2
        vtop = 252 if c.prof else 256
        regfree = [Cell("a", b) for b in range(0, 256, 4)] + [Cell("v", b) for b in range(64, vtop, 4)]
        ldsfree = [Cell("l", k) for k in range(40)]
        st = dict(pos=0, nvm=0, comp=0, credit=0.0, v1reg=0)

        def emit_load(ld):
            b = ld["b"]; cell = ld["cell"]
            if ld["kind"] == "K":
                imm = ld["g"] * 256 + ld["hf"] * 128
                voff = vOffK; srd = SRDK[b]
            else:
                q = ld["q"]; imm = (q & 3) * 1024
                voff = vOffV if q < 4 else vOffV2; srd = SRDV[b]
            so = sOff(ld["slot"], b)
            if cell.kind == "l":
                a(f"s_add_u32 m0, {sLdsB}, {cell.base * 1024 - imm}" if cell.base * 1024 - imm >= 0 else f"s_sub_u32 m0, {sLdsB}, {imm - cell.base * 1024}")
                a(f"buffer_load_dwordx4 v{voff}, {srd}, {so} offen offset:{imm} {c.kv} lds")
            else:
                a(f"buffer_load_dwordx4 {cell.reg()}, v{voff}, {srd}, {so} offen offset:{imm} {c.kv}")

        def q_addr(t):
            a(f"v_and_b32 v{t}, 0x10, v{vOffV}")
            a(f"v_lshlrev_b32 v{t}, 2, v{t}")
            a(f"v_lshrrev_b32 v{t+1}, 8, v{vOffV}")
            a(f"v_lshlrev_b32 v{t+1}, 4, v{t+1}")
            a(f"v_add_u32 v{t}, v{t}, v{t+1}")

        def q_addr2(d, t):
            a(f"v_and_b32 v{d}, 0x10, v{vOffV}")
            a(f"v_lshlrev_b32 v{d}, 2, v{d}")
            a(f"v_lshrrev_b32 v{t}, 8, v{vOffV}")
            a(f"v_lshlrev_b32 v{t}, 4, v{t}")
            a(f"v_add_u32 v{d}, v{d}, v{t}")

        def q_loads(lay, b):
            a(f"s_add_u32 {sT[0]}, {sQ}, {(lay * 2 + b) * E5Q_I}")
            a(f"buffer_load_dwordx4 v[{vQ[b]}:{vQ[b]+3}], v{t1}, {SRD_E}, {sT[0]} offen sc1")
            a(f"buffer_load_dwordx4 v[{vQ[b]+4}:{vQ[b]+7}], v{t1}, {SRD_E}, {sT[0]} offen offset:128 sc1")

        def waitvm(seq):
            if seq >= st["comp"]:
                a(f"s_waitcnt vmcnt({min(63, st['nvm'] - 1 - seq)})")
                st["comp"] = seq + 1

        def issue_next(throttle):
            if st["pos"] >= len(issue): return False
            op = issue[st["pos"]]
            k = op["kind"]
            if k == "CNTCHK":
                waitvm(CNT["seq"])
                ok = a.newlabel("L_cok")
                a(f"v_cmp_gt_u32 vcc, 32, v{t0}")
                a(f"s_cbranch_vccz {ok}")
                self.cnt_wait(0, 32, t0)
                a.label(ok)
                st["pos"] += 1
                return True
            n = 1
            if k == "Q": n = 2 * len(op["bs"])
            if k in ("K", "V"):
                cell = None
                lc = [x for x in ldsfree if x.base >= (op.get("q", 0) & 3)] if op.get("lds") else []
                if lc:
                    cell = lc[0]; ldsfree.remove(cell)
                elif regfree and not (op.get("cap") and st["v1reg"] >= c.v1regcap):
                    if st["nvm"] - st["comp"] + n > W and not throttle: return False
                    cell = regfree.pop(0)
                    if op.get("cap"): st["v1reg"] += 1
                if cell is None: return False
                if st["nvm"] - st["comp"] + n > W and not throttle:
                    (ldsfree if cell.kind == "l" else regfree).insert(0, cell)
                    return False
                op["cell"] = cell
            if st["nvm"] - st["comp"] + n > W:
                if not throttle: return False
                keep = W - n
                a(f"s_waitcnt vmcnt({keep})")
                st["comp"] = st["nvm"] - keep
            if k in ("K", "V"):
                emit_load(op)
            elif k == "CNT":
                a(f"v_mov_b32 v{t0}, 0")
                a(f"global_load_dword v{t0}, v{t0}, s[{pDBG[0]}:{pDBG[1]}] sc1")
            elif k == "CNT2":
                a(f"v_mov_b32 v{vO1}, 0")
                a(f"global_load_dword v{vO1}, v{vO1}, s[{pDBG[0]}:{pDBG[1]}] offset:128 sc1")
            elif k == "Q":
                assert op["lay"] == 0 or st.get("j1qk"), "q2 issued while q1 still in use"
                for b in op["bs"]: q_loads(op["lay"], b)
            st["nvm"] += n
            op["seq"] = st["nvm"] - 1
            st["pos"] += 1
            return True

        def pump(cycles):
            while issue_next(False):
                st["credit"] = max(0.0, st["credit"] - 1)
            st["credit"] = min(st["credit"] + cycles / c.pace, 2.0)
            while st["credit"] >= 1 and issue_next(True):
                st["credit"] -= 1

        def release(ld, second=False):
            if ld.get("keep") and not second: return
            cell = ld["cell"]
            if ld.get("cap") and cell.kind != "l": st["v1reg"] -= 1
            (ldsfree if cell.kind == "l" else regfree).append(cell)

        def q_check(lay, bs):
            regs = []
            for b in bs: regs += list(range(vQ[b], vQ[b] + 8))
            ok = a.newlabel("L_qok")
            self.sent_cmp(regs, t0)
            a(f"s_cbranch_vccz {ok}")
            def iss():
                for b in bs: q_loads(lay, b)
            self.poll(regs, iss, 2 * len(bs), c.dps, c.kps, t0)
            a.label(ok)

        def qk(L, b, second=False):
            S = vS[b]
            D0 = vD; D1 = vD + 4
            q0 = f"v[{vQ[b]}:{vQ[b]+3}]"; q1 = f"v[{vQ[b]+4}:{vQ[b]+7}]"
            for k in range(0, len(L), 4):
                grp = L[k:k + 4]
                waitvm(max(l["seq"] for l in grp))
                regs = [l["cell"].reg() for l in grp]
                a(f"v_mfma_f32_16x16x32_bf16 v[{D0}:{D0+3}], {q0}, {regs[0]}, 0")
                a(f"v_mfma_f32_16x16x32_bf16 v[{D1}:{D1+3}], {q0}, {regs[2]}, 0")
                a(f"v_mfma_f32_16x16x32_bf16 v[{D0}:{D0+3}], {q1}, {regs[1]}, v[{D0}:{D0+3}]")
                a(f"v_mfma_f32_16x16x32_bf16 v[{D1}:{D1+3}], {q1}, {regs[3]}, v[{D1}:{D1+3}]")
                for l in grp: release(l, second)
                pump(90)
                for D, ld in ((D0, grp[0]), (D1, grp[2])):
                    r = ld["slot"] >> 1; half = ld["slot"] & 1; g = ld["g"]
                    if half == 0:
                        a(f"v_add_f32_dpp v{S+r}, v{D+1}, v{D} row_ror:8 row_mask:{1<<g:#x} bank_mask:0x3")
                    else:
                        a(f"v_add_f32_dpp v{S+r}, v{D}, v{D+1} row_ror:8 row_mask:{1<<g:#x} bank_mask:0xc")

        def softmax(b):
            S = vS[b]; rs = list(range(5))
            tt = vD
            for k in range(0, 5, 2):
                r0 = S + k; r1 = S + k + 1 if k + 1 < 5 else r0
                a(f"v_cvt_pk_bf16_f32 v{tt}, v{r0}, v{r1}")
                a(f"v_lshlrev_b32 v{r0}, 16, v{tt}")
                if r1 != r0: a(f"v_and_b32 v{r1}, 0xffff0000, v{tt}")
                a(f"v_mul_f32 v{r0}, {SCALE:#x}, v{r0}")
                if r1 != r0: a(f"v_mul_f32 v{r1}, {SCALE:#x}, v{r1}")
                a(f"v_cvt_pk_bf16_f32 v{tt}, v{r0}, v{r1}")
                a(f"v_lshlrev_b32 v{r0}, 16, v{tt}")
                if r1 != r0: a(f"v_and_b32 v{r1}, 0xffff0000, v{tt}")
            a(f"v_mov_b32 v{tt}, 0xff800000")
            a(f"v_cndmask_b32 v{S+4}, v{S+4}, v{tt}, {sMask[b]}")
            m = vMx[b]
            a(f"v_max_f32 v{m}, v{S}, v{S+1}")
            a(f"v_max3_f32 v{m}, v{m}, v{S+2}, v{S+3}")
            a(f"v_max_f32 v{m}, v{m}, v{S+4}")
            self.red_all(m, tt, "v_max_f32")
            for r in rs:
                a(f"v_sub_f32 v{S+r}, v{S+r}, v{m}")
                a(f"v_mul_f32 v{S+r}, {LOG2E:#x}, v{S+r}")
                a(f"v_exp_f32 v{S+r}, v{S+r}")
            l = vL[b]
            a(f"v_add_f32 v{l}, v{S}, v{S+1}")
            a(f"v_add_f32 v{tt}, v{S+2}, v{S+3}")
            a(f"v_add_f32 v{l}, v{l}, v{S+4}")
            a(f"v_add_f32 v{l}, v{l}, v{tt}")
            for r in rs:
                a(f"v_cvt_pk_bf16_f32 v{S+r}, v{S+r}, v{S+r}")
            pump(350)

        def pv(L, b, O, zero, second=False):
            S = vS[b]
            if not L: return
            def prep(k):
                ld = L[k]
                waitvm(ld["seq"])
                if ld["cell"].kind == "l":
                    tb = vTmp + 4 * (k & 1)
                    a(f"ds_read_b128 v[{tb}:{tb+3}], v{vLds} offset:{ld['cell'].base * 1024}")
                A = vD + 4 * (k & 1)
                r = ld["slot"] >> 1; n = (ld["slot"] & 1) * 8 + ld["q"]
                for i in range(4):
                    a(f"v_and_b32_dpp v{A+i}, v{S+r}, v{vM[i]} row_newbcast:{n} row_mask:0xf bank_mask:0xf")
            prep(0)
            for k, ld in enumerate(L):
                nxt_lds = False
                if k + 1 < len(L):
                    prep(k + 1); nxt_lds = L[k + 1]["cell"].kind == "l"
                A = vD + 4 * (k & 1)
                if ld["cell"].kind == "l":
                    a(f"s_waitcnt lgkmcnt({1 if nxt_lds else 0})")
                    tb = vTmp + 4 * (k & 1)
                    B = f"v[{tb}:{tb+3}]"
                else:
                    B = ld["cell"].reg()
                cin = "0" if (zero and k == 0) else f"v[{O}:{O+3}]"
                a(f"v_mfma_f32_16x16x32_bf16 v[{O}:{O+3}], v[{A}:{A+3}], {B}, {cin}")
                release(ld, second)
                pump(28)

        def publish(inst, b, O):
            l = vL[b]; m = vMx[b]
            self.red_all(l, vD, "v_add_f32")
            a(f"v_log_f32 v{vD+2}, v{l}")
            a(f"v_rcp_f32 v{l}, v{l}")
            a(f"v_and_b32 v{vD}, 0xf0, v{vOffV}")
            a(f"v_lshlrev_b32 v{vD}, 1, v{vD}")
            a(f"v_lshrrev_b32 v{vD+1}, 8, v{vOffV}")
            a(f"v_lshlrev_b32 v{vD+1}, 4, v{vD+1}")
            a(f"v_add_u32 v{vD}, v{vD}, v{vD+1}")
            a(f"s_add_u32 {sT[0]}, {sE1O}, {inst * E1O_I}")
            for e in range(4): a(f"s_mov_b32 {sT[8+e]}, {0x07060500 + e:#x}")
            a(f"v_mul_f32 v{vD+2}, 0x3f317218, v{vD+2}")
            a(f"v_add_f32 v{vD+2}, v{vD+2}, v{m}")
            for e in range(4): a(f"v_mul_f32 v{O+e}, v{O+e}, v{l}")
            for e in range(4): a(f"v_perm_b32 v{O+e}, v{O+e}, v{vD+2}, {sT[8+e]}")
            a("s_mov_b64 exec, 0xffffffff")
            a(f"buffer_store_dwordx4 v[{O}:{O+3}], v{vD}, {SRD_E}, {sT[0]} offen sc1")
            a("s_mov_b64 exec, -1")

        for _ in range(W): issue_next(True)
        a(f"v_and_b32 v{t0}, 15, v0")
        a(f"v_and_b32 v{t1}, 1, v0")
        a(f"v_mov_b32 v{vD}, 0xffff")
        a(f"v_mov_b32 v{vD+1}, 0xffff0000")
        a(f"v_cmp_eq_u32 vcc, 1, v{t1}")
        a(f"v_cndmask_b32 v{vD}, v{vD}, v{vD+1}, vcc")
        a(f"v_lshrrev_b32 v{t0}, 1, v{t0}")
        for r in range(4):
            a(f"v_cmp_eq_u32 vcc, {r}, v{t0}")
            a(f"v_cndmask_b32 v{vM[r]}, 0, v{vD}, vcc")
        a(f"v_add_u32 v{vLds}, {sLdsB}, v{vOffV}")
        q_addr2(t1, t0)
        a(f"s_lshl_b32 {sQ}, {sH}, 8")
        a(f"s_add_u32 {sQ}, {sQ}, {E5Q}")
        while "seq" not in Q1: assert issue_next(True)
        for _ in range(W - 4): issue_next(False)
        waitvm(Q1["seq"])
        q_check(0, [0])
        self.stamp(2)
        qk(K0, 0); st["j1qk"] = True; softmax(0); self.stamp(3)
        pv(V0, 0, vO, True)
        while "seq" not in CNT2: assert issue_next(True)
        waitvm(CNT2["seq"])
        a(f"v_cmp_gt_u32 vcc, 32, v{vO1}")
        a("s_cbranch_vccz L_s_cb")
        self.cnt_wait(128, 32, t0)
        a.label("L_s_cb")
        publish(0, 0, vO); self.stamp(4)
        while "seq" not in Q1b: assert issue_next(True)
        waitvm(Q1b["seq"])
        q_check(0, [1])
        qk(K1, 1); softmax(1); self.stamp(5)
        pv(V1pre, 1, vO1, True)
        while "seq" not in Q2: assert issue_next(True)
        waitvm(Q2["seq"])
        self.stamp(6)
        q_check(1, [0])
        self.stamp(7)
        K0ret = [l for l in K0 if l["keep"]]; V0ret = [l for l in V0 if l["keep"]]
        V0ret.sort(key=lambda l: 0 if l["cell"].kind == "l" else 1)
        qk(K0ret + K0n, 0, True); softmax(0); self.stamp(8)
        pv(V0ret + V0n, 0, vO, True, True); publish(2, 0, vO); self.stamp(9)
        pv(V1rest + V1x, 1, vO1, npre == 0); publish(1, 1, vO1); self.stamp(10)
        while issue_next(True): pass
        self.stamp(11)
        self.poll(range(vQ[1], vQ[1] + 8), lambda: q_loads(1, 1), 2, c.dps, c.kps, t0)
        st["comp"] = st["nvm"]
        self.stamp(12)
        c.pace = 1e9
        qk(K1p, 1, True); softmax(1); self.stamp(13)
        V1r2 = sorted(V1rest, key=lambda l: 0 if l["cell"].kind != "l" else 1)
        pv(V1r2 + V1pre2 + V1x2, 1, vO, True, True); publish(3, 1, vO); self.stamp(14)
        if c.prof:
            a("s_waitcnt vmcnt(0)"); self.stamp(15)
        assert st["pos"] == len(issue), (st["pos"], len(issue))
        a("s_branch L_fin")

    def chain(self):
        a = self.a; c = self.c
        vLane = 0
        vM = [4, 5, 6, 7]; vM2 = [8, 9, 10, 11]
        PA_ = 128
        PC_ = 152
        PD_ = 160
        vPA = 13
        vLdsC = 14
        vLN = 15
        T = 16
        SRD_W = "s[8:11]"
        sC = "s62"; sIt = "s63"; sInst = "s64"; sB = "s65"; sLay = "s66"; sG = "s67"; sXW = "s68"; sIs3 = "s69"
        sO = [f"s{i}" for i in range(28, 40)]
        CELLS_W = 33 * 1024
        XW = 0
        PA1 = XW + 4 * 1280 + 512
        PA2 = PA1 + 4 * 2560
        PA4 = PA2 + 4096
        XRAW = PA4 + 4096
        X1S = XW + 4 * 1280
        CELL0 = 26624
        assert XRAW + 2560 <= CELL0 and CELL0 + 4 * CELLS_W <= LDS_TOTAL
        WQ = [Cell("a", 4 * k) for k in range(40)]
        WO = [Cell("a", 160 + 4 * k) for k in range(24)] + [Cell("v", 64 + 4 * k) for k in range(16)]
        nreg = 21 if c.prof else 22
        R2 = [Cell("v", 168 + 4 * k) for k in range(nreg)]
        W1A = R2[:20]; W1B = R2[20:] + [Cell("l", k) for k in range(20 - (nreg - 20))]
        W2 = R2 + [Cell("l", k) for k in range(54 - nreg)]
        assert 54 - nreg <= 33
        CW = CELLS_W
        a.label("L_chain")
        a(f"s_sub_u32 {sC}, {sW}, 224")
        a(f"s_cmp_ge_u32 {sC}, 22")
        a(f"s_cselect_b32 {sIs3}, 1, 0")
        a(f"v_lshlrev_b32 v{vLN}, 4, v{vLane}")
        a(f"v_lshrrev_b32 v1, 4, v{vLane}")
        a(f"v_and_b32 v2, 15, v{vLane}")
        a("s_waitcnt lgkmcnt(0)")
        self.srd(24, pWS, E_SIZE)

        def wload(cell, voff, soff, imm):
            if cell.kind == "l":
                a(f"s_add_u32 m0, {sO[11]}, {cell.base * 1024 - imm}" if cell.base * 1024 - imm >= 0 else f"s_sub_u32 m0, {sO[11]}, {imm - cell.base * 1024}")
                a(f"buffer_load_dwordx4 v{voff}, {SRD_W}, {soff} offen offset:{imm} {c.wf} lds")
            else:
                a(f"buffer_load_dwordx4 {cell.reg()}, v{voff}, {SRD_W}, {soff} offen offset:{imm} {c.wf}")
        a(f"s_mul_i32 {sO[11]}, {sWave}, {CW}")
        a(f"s_add_u32 {sO[11]}, {sO[11]}, {CELL0}")
        for k in range(4): a(f"v_mov_b32 v{T+4+k}, -1")
        D4 = f"v[{T+4}:{T+7}]"
        a(f"s_cmp_lg_u32 {sWave}, 0")
        a("s_cbranch_scc1 L_c_noq")
        a(f"v_mul_u32_u24 v{T+8}, {E5Q_I}, v1")
        a(f"v_lshlrev_b32 v{T+9}, 4, v2")
        a(f"v_add_u32 v{T+8}, v{T+8}, v{T+9}")
        a(f"s_lshl_b32 {sT[1]}, {sC}, 8")
        a(f"s_add_u32 {sT[1]}, {sT[1]}, {E5Q}")
        a(f"buffer_store_dwordx4 {D4}, v{T+8}, {SRD_E}, {sT[1]} offen sc1")
        a.label("L_c_noq")
        self.srd(8, pX, 2560)
        a(f"v_and_b32 v{T+8}, 0xf0, v{vLN}")
        for b, P in ((0, PD_), (1, PC_)):
            a(f"buffer_load_dwordx4 v[{P}:{P+3}], v{vLN}, {SRD_W}, 0 offen offset:{b * 1280}")
            a(f"buffer_load_dwordx4 v[{P+4}:{P+7}], v{T+8}, {SRD_W}, 0 offen offset:{b * 1280 + 1024}")
        self.srd(8, pWQ, 640 * 8192)
        a(f"v_lshlrev_b32 v{T}, 13, v1")
        a(f"v_lshlrev_b32 v{T+1}, 4, v2")
        a(f"v_add_u32 v{T}, v{T}, v{T+1}")
        a(f"s_mul_i32 {sT[0]}, {sWave}, {160 * 8192}")
        a(f"s_lshl_b32 {sT[1]}, {sC}, 8")
        a(f"s_add_u32 {sT[0]}, {sT[0]}, {sT[1]}")
        def wq_loads(k0, k1):
            for k in range(k0, k1):
                wload(WQ[k], T, sT[0], 0)
                if k < 39: a(f"s_add_u32 {sT[0]}, {sT[0]}, {4 * 8192}")
        wq_loads(0, c.wq0)
        a(f"s_cmp_lg_u32 {sWave}, 0")
        a("s_cbranch_scc1 L_c_noarrA")
        a(f"s_waitcnt vmcnt({4 + c.wq0})")
        a("s_mov_b64 exec, 1")
        a(f"v_mov_b32 v{T+10}, 0")
        a(f"v_mov_b32 v{T+11}, 1")
        a(f"global_atomic_add v{T+10}, v{T+11}, s[{pDBG[0]}:{pDBG[1]}] sc1")
        a("s_mov_b64 exec, -1")
        a.label("L_c_noarrA")
        a("s_barrier")
        wq_loads(c.wq0, 40)
        def clears():
            for k in range(4): a(f"v_mov_b32 v{T+4+k}, -1")
            a(f"s_mul_i32 {sT[0]}, {sWave}, {E2_I}")
            a(f"s_mul_i32 {sT[1]}, {sC}, 2560")
            a(f"s_add_u32 {sT[0]}, {sT[0]}, {sT[1]}")
            a(f"s_add_u32 {sT[0]}, {sT[0]}, {E2}")
            a(f"buffer_store_dwordx4 {D4}, v{vLN}, {SRD_E}, {sT[0]} offen sc1")
            a(f"buffer_store_dwordx4 {D4}, v{vLN}, {SRD_E}, {sT[0]} offen offset:1024 sc1")
            a("s_mov_b64 exec, 0xffffffff")
            a(f"buffer_store_dwordx4 {D4}, v{vLN}, {SRD_E}, {sT[0]} offen offset:2048 sc1")
            a("s_mov_b64 exec, -1")
            a(f"s_mul_i32 {sT[0]}, {sWave}, {E1O_I}")
            a(f"s_mul_i32 {sT[1]}, {sC}, {E1O_H}")
            a(f"s_add_u32 {sT[0]}, {sT[0]}, {sT[1]}")
            if E1O: a(f"s_add_u32 {sT[0]}, {sT[0]}, {E1O}")
            for k in range(14):
                a(f"buffer_store_dwordx4 {D4}, v{vLN}, {SRD_E}, {sT[0]} offen offset:{(k & 3) * 1024} sc1")
                if (k & 3) == 3: a(f"s_add_u32 {sT[0]}, {sT[0]}, 4096")
            a(f"s_lshl_b32 {sT[0]}, {sC}, 10")
            a(f"s_lshl_b32 {sT[1]}, {sWave}, 8")
            a(f"s_add_u32 {sT[0]}, {sT[0]}, {sT[1]}")
            a(f"s_add_u32 {sT[0]}, {sT[0]}, {MISC}")
            a("s_mov_b64 exec, 0xffff")
            a(f"buffer_store_dwordx4 {D4}, v{vLN}, {SRD_E}, {sT[0]} offen sc1")
            a("s_mov_b64 exec, -1")
        NCLR = 0
        vWA = 3; vWB = 12
        def wo_setup():
            self.srd(8, pWO, 4096 * 1280)
            a(f"v_mul_u32_u24 v{vWA}, 1280, v1")
            a(f"v_lshlrev_b32 v{vWB}, 4, v2")
            a(f"v_add_u32 v{vWA}, v{vWA}, v{vWB}")
            a(f"s_lshl_b32 {sO[8]}, {sC}, 2")
            a(f"s_add_u32 {sO[8]}, {sO[8]}, {sWave}")
            a(f"s_mul_i32 {sO[8]}, {sO[8]}, {32 * 1280}")
        def wo_loads(k0, k1):
            for k in range(k0, k1):
                rb, cg = divmod(k, 5)
                wload(WO[k], vWA, sO[8], cg * 256)
                if cg == 4 and rb < 7: a(f"s_add_u32 {sO[8]}, {sO[8]}, {4 * 1280}")
        wo_setup()
        a(f"v_mov_b32 v{vWB}, 0")
        a(f"global_load_dword v{vWB}, v{vWB}, s[{pDBG[0]}:{pDBG[1]}] sc1")
        NCLR += 1
        wo_loads(0, c.w1st)
        t = T + 12
        a(f"v_and_b32 v{t}, 1, v{vLane}")
        a(f"v_mov_b32 v{t+1}, 0xffff")
        a(f"v_mov_b32 v{t+2}, 0xffff0000")
        a(f"v_cmp_eq_u32 vcc, 1, v{t}")
        a(f"v_cndmask_b32 v{t+1}, v{t+1}, v{t+2}, vcc")
        a(f"v_lshrrev_b32 v{t}, 1, v2")
        for r in range(4):
            a(f"v_cmp_eq_u32 vcc, {r}, v{t}")
            a(f"v_cndmask_b32 v{vM[r]}, 0, v{t+1}, vcc")
        a(f"v_and_b32 v{t}, 3, v{t}")
        for r in range(4):
            a(f"v_cmp_eq_u32 vcc, {r}, v{t}")
            a(f"v_cndmask_b32 v{vM2[r]}, 0, v{t+1}, vcc")
        a(f"v_and_b32 v{t}, 7, v2")
        a(f"v_lshlrev_b32 v{vPA}, 5, v{t}")
        a(f"v_and_b32 v{t}, 1, v1")
        a(f"v_lshlrev_b32 v{t}, 4, v{t}")
        a(f"v_add_u32 v{vPA}, v{vPA}, v{t}")
        a(f"v_lshrrev_b32 v{t}, 1, v1")
        a(f"v_lshlrev_b32 v{t}, 8, v{t}")
        a(f"v_add_u32 v{vPA}, v{vPA}, v{t}")
        a(f"s_lshl_b32 {sT[0]}, {sWave}, 9")
        a(f"v_add_u32 v{vPA}, {sT[0]}, v{vPA}")
        a(f"v_add_u32 v{vLdsC}, {sO[11]}, v{vLN}")
        a(f"s_mul_i32 {sXW}, {sWave}, 1280")
        if XW: a(f"s_add_u32 {sXW}, {sXW}, {XW}")
        self.vprof = 255
        self.stamp(1)
        a(f"s_mov_b32 {sIt}, 0")

        def gemv(cells, afrag, accs):
            A0 = T + 40
            LT = T + 28
            NB = 3
            first = set(); nb = 0
            lds_seq = [k for k, (cl_, _, _) in enumerate(cells) if cl_.kind == "l"]
            if lds_seq: assert max(accs) + 3 < LT
            st = dict(issued=0, done=0, pend=0)
            def lds_issue():
                k = lds_seq[st["issued"]]
                tb = LT + 4 * (st["issued"] % NB)
                a(f"ds_read_b128 v[{tb}:{tb+3}], v{vLdsC} offset:{cells[k][0].base * 1024}")
                st["issued"] += 1
            for _ in range(min(NB, len(lds_seq))): lds_issue()
            cur = None
            for k, (cell, fid, ai) in enumerate(cells):
                if fid != cur:
                    A = A0 + 4 * (nb & 1); nb += 1
                    afrag(fid, A); cur = fid
                while st["pend"]:
                    lds_issue(); st["pend"] -= 1
                if cell.kind == "l":
                    a(f"s_waitcnt lgkmcnt({st['issued'] - st['done'] - 1})")
                    tb = LT + 4 * (st["done"] % NB); B = f"v[{tb}:{tb+3}]"
                else:
                    B = cell.reg()
                acc = accs[ai]
                cin = f"v[{acc}:{acc+3}]" if ai in first else "0"
                first.add(ai)
                a(f"v_mfma_f32_16x16x32_bf16 v[{acc}:{acc+3}], v[{A}:{A+3}], {B}, {cin}")
                if cell.kind == "l":
                    st["done"] += 1
                    if st["issued"] + st["pend"] < len(lds_seq): st["pend"] += 1

        def mix(cells):
            L = [x for x in cells if x[0].kind == "l"]; R = [x for x in cells if x[0].kind != "l"]
            out = []
            n = len(L) + len(R); il = ir = 0
            for k in range(n):
                if il < len(L) and (ir >= len(R) or il * len(R) <= ir * len(L)):
                    if ir < 2 and ir < len(R): out.append(R[ir]); ir += 1
                    else: out.append(L[il]); il += 1
                else:
                    out.append(R[ir]); ir += 1
            return out

        def afrag_bcast(X):
            def f(fid, A):
                q, n = fid >> 4, fid & 15
                for i in range(4):
                    a(f"v_and_b32_dpp v{A+i}, v{X+q}, v{vM[i]} row_newbcast:{n} row_mask:0xf bank_mask:0xf")
            return f
        def afrag_quad(X):
            def f(fid, A):
                q, k = fid >> 2, fid & 3
                for i in range(4):
                    a(f"v_and_b32_dpp v{A+i}, v{X+q}, v{vM2[i]} quad_perm:[{k},{k},{k},{k}] row_mask:0xf bank_mask:0xf")
            return f

        def ln(SRC):
            XI = T; F = T + 8
            t = T + 24
            for k in range(4):
                a(f"v_lshlrev_b32 v{F+2*k}, 16, v{SRC+k}")
                a(f"v_and_b32 v{F+2*k+1}, 0xffff0000, v{SRC+k}")
            for k in range(8, 16): a(f"v_mov_b32 v{F+k}, 0")
            a("s_mov_b64 exec, 0xffff")
            for k in range(4, 8):
                a(f"v_lshlrev_b32 v{F+2*k}, 16, v{SRC+k}")
                a(f"v_and_b32 v{F+2*k+1}, 0xffff0000, v{SRC+k}")
            a("s_mov_b64 exec, -1")
            a(f"v_pk_add_f32 v[{t}:{t+1}], v[{F}:{F+1}], v[{F+2}:{F+3}]")
            a(f"v_pk_add_f32 v[{t+2}:{t+3}], v[{F+4}:{F+5}], v[{F+6}:{F+7}]")
            for k in range(4, 8, 2):
                a(f"v_pk_add_f32 v[{t}:{t+1}], v[{t}:{t+1}], v[{F+2*k}:{F+2*k+1}]")
                a(f"v_pk_add_f32 v[{t+2}:{t+3}], v[{t+2}:{t+3}], v[{F+2*k+2}:{F+2*k+3}]")
            a(f"v_pk_add_f32 v[{t}:{t+1}], v[{t}:{t+1}], v[{t+2}:{t+3}]")
            mean = t + 4; var = t + 5
            a(f"v_add_f32 v{mean}, v{t}, v{t+1}")
            self.red_all(mean, t, "v_add_f32")
            a(f"v_mul_f32 v{mean}, 0x3acccccd, v{mean}")
            a(f"v_sub_f32 v{t+6}, 0, v{mean}")
            a(f"v_sub_f32 v{t+7}, 0, v{mean}")
            for k in range(4): a(f"v_mov_b32 v{t+k}, 0")
            for k in range(8):
                if k == 4: a("s_mov_b64 exec, 0xffff")
                acc = t + 2 * (k & 1)
                tmp = T + 32 + 2 * (k & 1)
                a(f"v_pk_add_f32 v[{tmp}:{tmp+1}], v[{F+2*k}:{F+2*k+1}], v[{t+6}:{t+7}]")
                a(f"v_pk_fma_f32 v[{acc}:{acc+1}], v[{tmp}:{tmp+1}], v[{tmp}:{tmp+1}], v[{acc}:{acc+1}]")
            a("s_mov_b64 exec, -1")
            a(f"v_pk_add_f32 v[{t}:{t+1}], v[{t}:{t+1}], v[{t+2}:{t+3}]")
            a(f"v_add_f32 v{var}, v{t}, v{t+1}")
            self.red_all(var, t, "v_add_f32")
            a(f"v_mul_f32 v{var}, 0x3acccccd, v{var}")
            self.bf16r(var, var)
            a(f"v_add_f32 v{var}, 0x3727c5ac, v{var}")
            self.bf16r(var, var)
            a(f"v_sqrt_f32 v{var}, v{var}")
            self.bf16r(var, var)
            a(f"v_rcp_f32 v{t}, v{var}")
            self.bf16r(mean, mean)
            a(f"v_mov_b32 v{t+1}, v{t}")
            a(f"v_sub_f32 v{t+6}, 0, v{mean}")
            a(f"v_sub_f32 v{t+7}, 0, v{mean}")
            for k in range(8):
                f = F + 2 * k
                a(f"v_pk_add_f32 v[{f}:{f+1}], v[{f}:{f+1}], v[{t+6}:{t+7}]")
            for k in range(8):
                f = F + 2 * k
                a(f"v_cvt_pk_bf16_f32 v{XI+k}, v{f}, v{f+1}")
            for k in range(8):
                f = F + 2 * k
                a(f"v_lshlrev_b32 v{f}, 16, v{XI+k}")
                a(f"v_and_b32 v{f+1}, 0xffff0000, v{XI+k}")
            for k in range(8):
                f = F + 2 * k
                a(f"v_pk_mul_f32 v[{f}:{f+1}], v[{f}:{f+1}], v[{t}:{t+1}]")
            for k in range(8):
                f = F + 2 * k
                a(f"v_cvt_pk_bf16_f32 v{XI+k}, v{f}, v{f+1}")
            a(f"v_add_u32 v{t}, {sXW}, v{vLN}")
            a(f"ds_write_b128 v{t}, v[{XI}:{XI+3}]")
            a("s_mov_b64 exec, 0xffff")
            a(f"ds_write_b128 v{t}, v[{XI+4}:{XI+7}] offset:1024")
            a("s_mov_b64 exec, -1")

        def xregs(X, n, addr, step):
            for q in range(n):
                a(f"ds_read_u16 v{X+q}, v{addr} offset:{q * step}")
            for q in range(n):
                a(f"s_waitcnt lgkmcnt({min(15, n - 1 - q)})")
                a(f"v_lshl_or_b32 v{X+q}, v{X+q}, 16, v{X+q}")

        def gather_x(soff, P):
            a(f"v_and_b32 v{T+8}, 0xf0, v{vLN}")
            def iss():
                a(f"buffer_load_dwordx4 v[{P}:{P+3}], v{vLN}, {SRD_E}, {soff} offen sc1")
                a(f"buffer_load_dwordx4 v[{P+4}:{P+7}], v{T+8}, {SRD_E}, {soff} offen offset:1024 sc1")
            self.poll(range(P, P + 8), iss, 2, c.dp, c.kp, T + 9)

        a.label("L_c_loop")
        if c.prof: a(f"s_mul_i32 {sG}, {sIt}, 10")
        a(f"s_cmp_ge_u32 {sIt}, 2")
        a("s_cbranch_scc1 L_c_inst")
        a(f"s_mov_b32 {sB}, {sIt}")
        a(f"s_mov_b32 {sLay}, 1")
        a(f"s_mov_b32 {sO[0]}, 0")
        a(f"s_cmp_eq_u32 {sIt}, 0")
        a("s_cbranch_scc0 L_c_x01")
        a(f"s_waitcnt vmcnt({min(63, 2 + 40 + NCLR + c.w1st)})")
        a("s_branch L_c_s4")
        a.label("L_c_x01")
        for k in range(8): a(f"v_mov_b32 v{PD_+k}, v{PC_+k}")
        a("s_branch L_c_s4")

        a.label("L_c_inst")
        a(f"s_and_b32 {sLay}, {sIt}, 1")
        a(f"s_sub_u32 {sB}, {sIt}, 2")
        a(f"s_lshr_b32 {sB}, {sB}, 1")
        a(f"s_lshl_b32 {sInst}, {sLay}, 1")
        a(f"s_add_u32 {sInst}, {sInst}, {sB}")
        a(f"s_mul_i32 {sO[1]}, {sInst}, {E1O_I}")
        a(f"s_mul_i32 {sT[0]}, {sC}, {E1O_H}")
        a(f"s_add_u32 {sO[1]}, {sO[1]}, {sT[0]}")
        a(f"s_lshl_b32 {sT[0]}, {sWave}, 7")
        a(f"s_add_u32 {sO[1]}, {sO[1]}, {sT[0]}")
        if E1O: a(f"s_add_u32 {sO[1]}, {sO[1]}, {E1O}")
        vo = T + 24; vo3 = T + 25; vm = T + 26
        a(f"v_lshrrev_b32 v{vm}, 3, v{vLane}")
        a(f"v_lshlrev_b32 v{vo}, 9, v{vm}")
        a(f"v_and_b32 v{vo3}, 7, v{vLane}")
        a(f"v_lshlrev_b32 v{vo3}, 4, v{vo3}")
        a(f"v_add_u32 v{vo}, v{vo}, v{vo3}")
        a(f"v_and_b32 v{vo3}, 0x7ff, v{vo}")
        a(f"s_add_u32 {sO[3]}, {sO[1]}, 4096")
        a(f"s_add_u32 {sO[4]}, {sO[1]}, 8192")
        a(f"s_add_u32 {sO[5]}, {sO[1]}, 12288")
        def e1_iss():
            for i, so in enumerate((sO[1], sO[3], sO[4], sO[5])):
                a(f"buffer_load_dwordx4 v[{PA_+4*i}:{PA_+4*i+3}], v{vo if i < 3 else vo3}, {SRD_E}, {so} offen sc1")
        a(f"s_mov_b32 {sT[8]}, 0x0c0c0400")
        self.poll(range(PA_, PA_ + 16), e1_iss, 4, c.dp1, c.kp1, T + 27)
        self.stampv(63, sCnt)
        self.stamp(0, sG)
        M = T + 27; tt = T + 28
        mi = [T + 20 + i for i in range(4)]
        ms = [T + 16 + i for i in range(4)]
        for i in range(4):
            a(f"v_perm_b32 v{mi[i]}, v{PA_+4*i+1}, v{PA_+4*i}, {sT[8]}")
            a(f"v_perm_b32 v{ms[i]}, v{PA_+4*i+3}, v{PA_+4*i+2}, {sT[8]}")
        for i in range(4): a(f"v_lshl_or_b32 v{mi[i]}, v{ms[i]}, 16, v{mi[i]}")
        a("s_mov_b64 exec, 0xffffffff00000000")
        a(f"v_mov_b32 v{mi[3]}, 0xff800000")
        a("s_mov_b64 exec, -1")
        a(f"v_max_f32 v{M}, v{mi[0]}, v{mi[1]}")
        a(f"v_max3_f32 v{M}, v{M}, v{mi[2]}, v{mi[3]}")
        self.red_hi(M, tt, "v_max_f32")
        for m, w_ in zip(mi, ms):
            a(f"v_sub_f32 v{w_}, v{m}, v{M}")
            a(f"v_mul_f32 v{w_}, {LOG2E:#x}, v{w_}")
            a(f"v_exp_f32 v{w_}, v{w_}")
        Ls = T + 29
        a(f"v_add_f32 v{Ls}, v{ms[0]}, v{ms[1]}")
        a(f"v_add_f32 v{tt}, v{ms[2]}, v{ms[3]}")
        a(f"v_add_f32 v{Ls}, v{Ls}, v{tt}")
        for e in range(4):
            a(f"v_mul_f32 v{T+e}, v{ms[0]}, v{PA_+e}")
            for i in range(1, 4): a(f"v_fmac_f32 v{T+e}, v{ms[i]}, v{PA_+4*i+e}")
        self.red_hi(Ls, tt, "v_add_f32")
        for e in range(4):
            a(f"v_add_f32_dpp v{T+e}, v{T+e}, v{T+e} row_ror:8 row_mask:0xf bank_mask:0xf")
        for e in range(4): a(f"v_mov_b32 v{T+4+e}, v{T+e}")
        for e in range(4): a(f"v_permlane16_swap_b32 v{T+e}, v{T+4+e}")
        for e in range(4): a(f"v_add_f32 v{T+e}, v{T+e}, v{T+4+e}")
        for e in range(4): a(f"v_mov_b32 v{T+4+e}, v{T+e}")
        for e in range(4): a(f"v_permlane32_swap_b32 v{T+e}, v{T+4+e}")
        a(f"v_rcp_f32 v{Ls}, v{Ls}")
        for e in range(4): a(f"v_add_f32 v{T+e}, v{T+e}, v{T+4+e}")
        X = T + 8
        a(f"v_mov_b32 v{X}, v{T}")
        for g in range(1, 4):
            a(f"v_mov_b32_dpp v{X}, v{T+g} quad_perm:[0,1,2,3] row_mask:{1<<g:#x} bank_mask:0xf")
        a(f"v_mul_f32 v{X}, v{X}, v{Ls}")
        a(f"v_cvt_pk_bf16_f32 v{X}, v{X}, v{X}")
        accs = [T + 12 + 4 * k for k in range(5)]
        gemv([(WO[rb * 5 + cg], rb, cg) for rb in range(8) for cg in range(5)], afrag_bcast(X), accs)
        t = T
        a(f"v_and_b32 v{t}, 0xf0, v{vLN}")
        a(f"v_lshlrev_b32 v{t}, 1, v{t}")
        a(f"v_and_b32 v{t+1}, 16, v{vLane}")
        a(f"v_add_u32 v{t}, v{t}, v{t+1}")
        a(f"s_mul_i32 {sT[0]}, {sWave}, 2560")
        a(f"v_add_u32 v{t}, {sT[0]}, v{t}")
        a("s_mov_b64 exec, 0xffffffff")
        for cg in range(5):
            a(f"ds_write_b128 v{t}, v[{accs[cg]}:{accs[cg]+3}] offset:{PA1 + 512 * cg}")
        a("s_mov_b64 exec, -1")
        a("s_waitcnt lgkmcnt(0)")
        a("s_barrier")
        a(f"s_mul_i32 {sT[0]}, {sWave}, 640")
        a(f"v_add_u32 v{t}, {sT[0]}, v{vLN}")
        a("s_mov_b64 exec, 0xffffffffff")
        for w in range(4):
            a(f"ds_read_b128 v[{t+4+4*w}:{t+7+4*w}], v{t} offset:{PA1 + 2560 * w}")
        a(f"s_mul_i32 {sT[1]}, {sInst}, {E2_I}")
        a(f"s_mul_i32 {sT[2]}, {sC}, 2560")
        a(f"s_add_u32 {sT[1]}, {sT[1]}, {sT[2]}")
        a(f"s_add_u32 {sT[1]}, {sT[1]}, {E2}")
        a("s_waitcnt lgkmcnt(0)")
        for e in range(4):
            a(f"v_add_f32 v{t+4+e}, v{t+4+e}, v{t+8+e}")
            a(f"v_add_f32 v{t+12+e}, v{t+12+e}, v{t+16+e}")
        for e in range(4):
            a(f"v_add_f32 v{t+4+e}, v{t+4+e}, v{t+12+e}")
        a(f"buffer_store_dwordx4 v[{t+4}:{t+7}], v{t}, {SRD_E}, {sT[1]} offen sc1")
        a("s_mov_b64 exec, -1")
        self.stamp(1, sG)
        a(f"s_mul_i32 {sO[6]}, {sInst}, {E3X_I}")
        a(f"s_add_u32 {sO[6]}, {sO[6]}, {E3X}")
        a(f"s_cmp_eq_u32 {sIs3}, 1")
        a("s_cbranch_scc1 L_c_s3")
        gather_x(sO[6], PC_)
        self.stampv(60, sCnt)
        self.stamp(3, sG)
        ln(PC_)
        t = T
        a(f"v_and_b32 v{t}, 3, v{vLane}")
        a(f"v_lshlrev_b32 v{t}, 4, v{t}")
        a(f"v_bfe_u32 v{t+1}, v{vLane}, 3, 1")
        a(f"v_lshlrev_b32 v{t+1}, 3, v{t+1}")
        a(f"v_add_u32 v{t}, v{t}, v{t+1}")
        a(f"v_lshrrev_b32 v{t+1}, 4, v{vLane}")
        a(f"v_lshlrev_b32 v{t+1}, 1, v{t+1}")
        a(f"v_add_u32 v{t}, v{t}, v{t+1}")
        a(f"s_mul_i32 {sT[0]}, {sWave}, 320")
        a(f"s_add_u32 {sT[0]}, {sT[0]}, {sXW}")
        a(f"v_add_u32 v{t}, {sT[0]}, v{t}")
        a("s_waitcnt lgkmcnt(0)")
        X = T + 4
        xregs(X, 5, t, 64)
        accs = [T + 12, T + 16, T + 20, T + 24]
        gemv([(W1A[k], k, k & 1) for k in range(20)], afrag_quad(X), accs)
        a(f"s_cmp_lt_u32 {sC}, 5")
        a("s_cbranch_scc0 L_c_s2_nob")
        gemv(mix([(W1B[k], k, 2 + (k & 1)) for k in range(20)]), afrag_quad(X), accs)
        for e in range(4): a(f"v_add_f32 v{accs[2]+e}, v{accs[2]+e}, v{accs[3]+e}")
        a("s_mov_b64 exec, 0xff00ff0000ff00ff")
        a(f"ds_write_b128 v{vPA}, v[{accs[2]}:{accs[2]+3}] offset:{PA2 + 2048}")
        a("s_mov_b64 exec, -1")
        a.label("L_c_s2_nob")
        for e in range(4): a(f"v_add_f32 v{accs[0]+e}, v{accs[0]+e}, v{accs[1]+e}")
        a("s_mov_b64 exec, 0xff00ff0000ff00ff")
        a(f"ds_write_b128 v{vPA}, v[{accs[0]}:{accs[0]+3}] offset:{PA2}")
        a("s_mov_b64 exec, -1")
        a("s_waitcnt lgkmcnt(0)")
        a("s_barrier")
        a(f"s_cmp_ge_u32 {sWave}, 2")
        a("s_cbranch_scc1 L_c_s2_done")
        a(f"s_cmp_lt_u32 {sC}, 5")
        a(f"s_cselect_b32 {sT[0]}, 2, 1")
        a(f"s_cmp_ge_u32 {sWave}, {sT[0]}")
        a("s_cbranch_scc1 L_c_s2_done")
        def sum8(base_s, dst):
            a(f"v_lshlrev_b32 v{T}, 3, v{vLane}")
            a(f"v_add_u32 v{T}, {base_s}, v{T}")
            for k in range(8):
                a(f"ds_read_b64 v[{T+4+2*k}:{T+5+2*k}], v{T} offset:{256 * k}")
            a("s_waitcnt lgkmcnt(0)")
            for k in (0, 2, 4, 6):
                a(f"v_pk_add_f32 v[{T+4+2*k}:{T+5+2*k}], v[{T+4+2*k}:{T+5+2*k}], v[{T+6+2*k}:{T+7+2*k}]")
            a(f"v_pk_add_f32 v[{T+4}:{T+5}], v[{T+4}:{T+5}], v[{T+8}:{T+9}]")
            a(f"v_pk_add_f32 v[{T+12}:{T+13}], v[{T+12}:{T+13}], v[{T+16}:{T+17}]")
            a(f"v_pk_add_f32 v[{dst}:{dst+1}], v[{T+4}:{T+5}], v[{T+12}:{T+13}]")
        a(f"s_lshl_b32 {sT[0]}, {sWave}, 11")
        a(f"s_add_u32 {sT[0]}, {sT[0]}, {PA2}")
        a("s_mov_b64 exec, 0xffffffff")
        H = T + 20
        sum8(sT[0], H)
        for e in range(2):
            self.bf16r(H + e, H + e)
            a(f"v_mul_f32 v{H+2}, {0x80000000 | LOG2E:#x}, v{H+e}")
            a(f"v_exp_f32 v{H+2}, v{H+2}")
            a(f"v_add_f32 v{H+2}, 1.0, v{H+2}")
            a(f"v_rcp_f32 v{H+2}, v{H+2}")
            a(f"v_mul_f32 v{H+e}, v{H+e}, v{H+2}")
        a(f"v_cvt_pk_bf16_f32 v{H}, v{H}, v{H+1}")
        a(f"s_mul_i32 {sT[0]}, {sWave}, 22")
        a(f"s_add_u32 {sT[0]}, {sT[0]}, {sC}")
        a(f"s_lshl_b32 {sT[0]}, {sT[0]}, 7")
        a(f"s_mul_i32 {sT[1]}, {sInst}, {E3H_I}")
        a(f"s_add_u32 {sT[0]}, {sT[0]}, {sT[1]}")
        a(f"s_add_u32 {sT[0]}, {sT[0]}, {E3H}")
        a(f"v_lshlrev_b32 v{T}, 2, v{vLane}")
        a(f"buffer_store_dword v{H}, v{T}, {SRD_E}, {sT[0]} offen sc1")
        a("s_mov_b64 exec, -1")
        a.label("L_c_s2_done")
        self.stamp(4, sG)
        a("s_branch L_c_s3_done")
        a.label("L_c_s3")
        a(f"s_sub_u32 {sO[7]}, {sC}, 22")
        a(f"s_lshl_b32 {sO[7]}, {sO[7]}, 7")
        a(f"s_cmp_lg_u32 {sWave}, 0")
        a("s_cbranch_scc1 L_c_h2a_done")
        t = T; PB_ = T + 16
        a(f"v_mul_u32_u24 v{t}, 2560, v1")
        a(f"v_lshlrev_b32 v{t+1}, 4, v2")
        a(f"v_add_u32 v{t}, v{t}, v{t+1}")
        a(f"s_mul_i32 {sT[0]}, {sInst}, {E2_I}")
        a(f"s_lshl_b32 {sT[1]}, {sO[7]}, 1")
        a(f"s_add_u32 {sT[0]}, {sT[0]}, {sT[1]}")
        a(f"s_add_u32 {sT[0]}, {sT[0]}, {E2}")
        for i in range(1, 8): a(f"s_add_u32 {sT[i]}, {sT[0]}, {i * 4 * 2560}")
        a(f"v_lshlrev_b32 v{t+1}, 3, v2")
        a(f"s_mul_i32 {sT[8]}, {sB}, 1280")
        a(f"s_add_u32 {sT[8]}, {sT[8]}, {sO[7]}")
        a(f"v_add_u32 v{t+2}, {sT[8]}, v{t+1}")
        a(f"ds_read_b64 v[{t+12}:{t+13}], v{t+2} offset:{XRAW}")
        def h2a_iss():
            for i in range(8):
                a(f"buffer_load_dwordx4 v[{PB_+4*i}:{PB_+4*i+3}], v{t}, {SRD_E}, {sT[i]} offen sc1")
        self.poll(range(PB_, PB_ + 32), h2a_iss, 8, c.dp, c.kp, t + 3)
        self.stampv(61, sCnt)
        a("s_waitcnt lgkmcnt(0)")
        for e in range(4):
            a(f"v_add_f32 v{t+4+e}, v{PB_+e}, v{PB_+4+e}")
            a(f"v_add_f32 v{t+8+e}, v{PB_+8+e}, v{PB_+12+e}")
        for e in range(4):
            a(f"v_add_f32 v{t+4+e}, v{t+4+e}, v{PB_+16+e}")
            a(f"v_add_f32 v{t+8+e}, v{t+8+e}, v{PB_+24+e}")
        for e in range(4):
            a(f"v_add_f32 v{t+4+e}, v{t+4+e}, v{PB_+20+e}")
            a(f"v_add_f32 v{t+8+e}, v{t+8+e}, v{PB_+28+e}")
        for e in range(4): a(f"v_add_f32 v{t+4+e}, v{t+4+e}, v{t+8+e}")
        for e in range(4): a(f"v_mov_b32 v{t+8+e}, v{t+4+e}")
        for e in range(4): a(f"v_permlane16_swap_b32 v{t+4+e}, v{t+8+e}")
        for e in range(4): a(f"v_add_f32 v{t+4+e}, v{t+4+e}, v{t+8+e}")
        for e in range(4): a(f"v_mov_b32 v{t+8+e}, v{t+4+e}")
        for e in range(4): a(f"v_permlane32_swap_b32 v{t+4+e}, v{t+8+e}")
        for e in range(4): a(f"v_add_f32 v{t+4+e}, v{t+4+e}, v{t+8+e}")
        a(f"v_cvt_pk_bf16_f32 v{t+8}, v{t+4}, v{t+5}")
        a(f"v_cvt_pk_bf16_f32 v{t+9}, v{t+6}, v{t+7}")
        for k in range(2):
            a(f"v_lshlrev_b32 v{t+4}, 16, v{t+8+k}")
            a(f"v_and_b32 v{t+5}, 0xffff0000, v{t+8+k}")
            a(f"v_lshlrev_b32 v{t+6}, 16, v{t+12+k}")
            a(f"v_and_b32 v{t+7}, 0xffff0000, v{t+12+k}")
            a(f"v_add_f32 v{t+4}, v{t+4}, v{t+6}")
            a(f"v_add_f32 v{t+5}, v{t+5}, v{t+7}")
            a(f"v_cvt_pk_bf16_f32 v{t+10+k}, v{t+4}, v{t+5}")
        a(f"s_add_u32 {sT[8]}, {sO[6]}, {sO[7]}")
        a("s_mov_b64 exec, 0xffff")
        a(f"buffer_store_dwordx2 v[{t+10}:{t+11}], v{t+1}, {SRD_E}, {sT[8]} offen sc1")
        a(f"ds_write_b64 v{t+1}, v[{t+10}:{t+11}] offset:{X1S}")
        a("s_mov_b64 exec, -1")
        a.label("L_c_h2a_done")
        self.stamp(2, sG)
        a(f"s_mul_i32 {sT[0]}, {sInst}, {E3H_I}")
        a(f"s_mul_i32 {sT[1]}, {sWave}, 864")
        a(f"s_add_u32 {sT[0]}, {sT[0]}, {sT[1]}")
        a(f"s_add_u32 {sT[0]}, {sT[0]}, {E3H}")
        a(f"v_min_u32 v{T+8}, {53*16}, v{vLN}")
        def h3_iss():
            a(f"buffer_load_dwordx4 v[{PC_}:{PC_+3}], v{T+8}, {SRD_E}, {sT[0]} offen sc1")
        self.poll(range(PC_, PC_ + 4), h3_iss, 1, c.dp, c.kp, T + 10)
        self.stampv(62, sCnt)
        self.stamp(3, sG)
        a(f"v_add_u32 v{T+8}, {sXW}, v{T+8}")
        a(f"ds_write_b128 v{T+8}, v[{PC_}:{PC_+3}]")
        t = T
        a(f"v_and_b32 v{t}, 3, v{vLane}")
        a(f"v_lshlrev_b32 v{t}, 4, v{t}")
        a(f"v_bfe_u32 v{t+1}, v{vLane}, 3, 1")
        a(f"v_lshlrev_b32 v{t+1}, 3, v{t+1}")
        a(f"v_add_u32 v{t}, v{t}, v{t+1}")
        a(f"v_lshrrev_b32 v{t+1}, 4, v{vLane}")
        a(f"v_lshlrev_b32 v{t+1}, 1, v{t+1}")
        a(f"v_add_u32 v{t}, v{t}, v{t+1}")
        a(f"v_add_u32 v{t}, {sXW}, v{t}")
        a("s_waitcnt lgkmcnt(0)")
        X = T + 4
        xregs(X, 14, t, 64)
        accs = [T + 20, T + 24]
        cl_ = mix([(W2[k], k, 0) for k in range(54)])
        gemv([(x[0], x[1], i & 1) for i, x in enumerate(cl_)], afrag_quad(X), accs)
        for e in range(4): a(f"v_add_f32 v{accs[0]+e}, v{accs[0]+e}, v{accs[1]+e}")
        a("s_mov_b64 exec, 0xff00ff0000ff00ff")
        a(f"ds_write_b128 v{vPA}, v[{accs[0]}:{accs[0]+3}] offset:{PA2}")
        a("s_mov_b64 exec, -1")
        a("s_waitcnt lgkmcnt(0)")
        a("s_barrier")
        a(f"s_cmp_lg_u32 {sWave}, 0")
        a("s_cbranch_scc1 L_c_s3_done")
        a(f"s_mov_b32 {sT[0]}, {PA2}")
        a("s_mov_b64 exec, 0xffffffff")
        vX1 = T + 24
        a(f"v_lshlrev_b32 v{vX1}, 2, v{vLane}")
        a(f"ds_read_b32 v{vX1}, v{vX1} offset:{X1S}")
        sum8(sT[0], H)
        a(f"v_cvt_pk_bf16_f32 v{H}, v{H}, v{H+1}")
        a(f"v_lshlrev_b32 v{T}, 16, v{H}")
        a(f"v_and_b32 v{T+1}, 0xffff0000, v{H}")
        a(f"v_lshlrev_b32 v{T+2}, 16, v{vX1}")
        a(f"v_and_b32 v{T+3}, 0xffff0000, v{vX1}")
        a(f"v_add_f32 v{T}, v{T}, v{T+2}")
        a(f"v_add_f32 v{T+1}, v{T+1}, v{T+3}")
        a(f"v_cvt_pk_bf16_f32 v{H}, v{T}, v{T+1}")
        a(f"v_lshlrev_b32 v{T}, 2, v{vLane}")
        a(f"s_mul_i32 {sT[0]}, {sB}, 1280")
        a(f"s_add_u32 {sT[0]}, {sT[0]}, {sO[7]}")
        a(f"s_cmp_eq_u32 {sLay}, 1")
        a("s_cbranch_scc1 L_c_s3_out")
        a(f"s_add_u32 {sT[0]}, {sT[0]}, {E4X}")
        a(f"buffer_store_dword v{H}, v{T}, {SRD_E}, {sT[0]} offen sc1")
        a("s_branch L_c_s3_st")
        a.label("L_c_s3_out")
        self.srd(8, pOUT, 2560)
        a(f"buffer_store_dword v{H}, v{T}, {SRD_W}, {sT[0]} offen")
        a.label("L_c_s3_st")
        a("s_mov_b64 exec, -1")
        a.label("L_c_s3_done")
        self.stamp(5, sG)
        a(f"s_cmp_eq_u32 {sLay}, 1")
        a("s_cbranch_scc1 L_c_next")
        a(f"s_mul_i32 {sT[0]}, {sB}, 1280")
        a(f"s_add_u32 {sT[0]}, {sT[0]}, {E4X}")
        a(f"s_mov_b32 {sO[9]}, {sT[0]}")
        gather_x(sO[9], PD_)
        a(f"s_mov_b32 {sO[0]}, 2")
        a.label("L_c_s4")
        self.stamp(6, sG)
        a(f"s_cmp_lg_u32 {sWave}, 0")
        a("s_cbranch_scc1 L_c_noraw")
        a(f"s_mul_i32 {sT[0]}, {sB}, 1280")
        a(f"v_add_u32 v{T+8}, {sT[0]}, v{vLN}")
        a(f"ds_write_b128 v{T+8}, v[{PD_}:{PD_+3}] offset:{XRAW}")
        a("s_mov_b64 exec, 0xffff")
        a(f"ds_write_b128 v{T+8}, v[{PD_+4}:{PD_+7}] offset:{XRAW + 1024}")
        a("s_mov_b64 exec, -1")
        a.label("L_c_noraw")
        ln(PD_)
        t = T
        a(f"v_and_b32 v{t}, 15, v{vLane}")
        a(f"v_lshlrev_b32 v{t}, 3, v{t}")
        a(f"v_lshrrev_b32 v{t+1}, 4, v{vLane}")
        a(f"v_lshlrev_b32 v{t+1}, 1, v{t+1}")
        a(f"v_add_u32 v{t}, v{t}, v{t+1}")
        a(f"s_mul_i32 {sT[0]}, {sWave}, 320")
        a(f"s_add_u32 {sT[0]}, {sT[0]}, {sXW}")
        a(f"v_add_u32 v{t}, {sT[0]}, v{t}")
        a("s_waitcnt lgkmcnt(0)")
        X = T + 4
        xregs(X, 3, t, 128)
        accs = [T + 12, T + 16]
        a(f"s_cmp_lg_u32 {sIt}, 0")
        a("s_cbranch_scc1 L_c_wqok")
        a(f"s_waitcnt vmcnt({NCLR + c.w1st})")
        a.label("L_c_wqok")
        a(f"s_cmp_lg_u32 {sIt}, 1")
        a("s_cbranch_scc1 L_c_clrok")
        a(f"s_waitcnt vmcnt({40 - c.w1st})")
        a.label("L_c_clrok")
        gemv([(WQ[k], k, k & 1) for k in range(40)], afrag_bcast(X), accs)
        for e in range(4): a(f"v_add_f32 v{accs[0]+e}, v{accs[0]+e}, v{accs[1]+e}")
        a(f"v_and_b32 v{t}, 0xf0, v{vLN}")
        a(f"v_lshlrev_b32 v{t}, 1, v{t}")
        a(f"v_and_b32 v{t+1}, 16, v{vLane}")
        a(f"v_add_u32 v{t}, v{t}, v{t+1}")
        a(f"s_and_b32 {sT[0]}, {sIt}, 1")
        a(f"s_lshl_b32 {sT[0]}, {sT[0]}, 11")
        a(f"s_lshl_b32 {sT[1]}, {sWave}, 9")
        a(f"s_add_u32 {sT[1]}, {sT[1]}, {sT[0]}")
        a(f"v_add_u32 v{t}, {sT[1]}, v{t}")
        a("s_mov_b64 exec, 0xffffffff")
        a(f"ds_write_b128 v{t}, v[{accs[0]}:{accs[0]+3}] offset:{PA4}")
        a("s_mov_b64 exec, -1")
        a("s_waitcnt lgkmcnt(0)")
        a("s_barrier")
        a(f"s_cmp_lg_u32 {sWave}, 0")
        a("s_cbranch_scc1 L_c_s4_done")
        a(f"v_lshlrev_b32 v{t}, 3, v{vLane}")
        a(f"v_add_u32 v{t}, {sT[0]}, v{t}")
        for w in range(4):
            a(f"ds_read_b64 v[{t+2+2*w}:{t+3+2*w}], v{t} offset:{PA4 + 512 * w}")
        a(f"s_cmp_lg_u32 {sIt}, 0")
        a("s_cbranch_scc1 L_c_nocnt")
        a(f"s_waitcnt vmcnt({c.w1st})")
        a(f"v_cmp_gt_u32 vcc, 32, v{vWB}")
        a("s_cbranch_vccz L_c_nocnt")
        self.cnt_wait(0, 32, t + 12)
        a.label("L_c_nocnt")
        a("s_waitcnt lgkmcnt(0)")
        a(f"v_pk_add_f32 v[{t+2}:{t+3}], v[{t+2}:{t+3}], v[{t+4}:{t+5}]")
        a(f"v_pk_add_f32 v[{t+6}:{t+7}], v[{t+6}:{t+7}], v[{t+8}:{t+9}]")
        a(f"v_pk_add_f32 v[{t+2}:{t+3}], v[{t+2}:{t+3}], v[{t+6}:{t+7}]")
        a(f"v_cvt_pk_bf16_f32 v{t+2}, v{t+2}, v{t+3}")
        a(f"s_add_u32 {sT[0]}, {sO[0]}, {sB}")
        a(f"s_mul_i32 {sT[0]}, {sT[0]}, {E5Q_I}")
        a(f"s_lshl_b32 {sT[1]}, {sC}, 8")
        a(f"s_add_u32 {sT[0]}, {sT[0]}, {sT[1]}")
        a(f"s_add_u32 {sT[0]}, {sT[0]}, {E5Q}")
        a(f"v_lshlrev_b32 v{t}, 2, v{vLane}")
        a(f"buffer_store_dword v{t+2}, v{t}, {SRD_E}, {sT[0]} offen sc1")
        a.label("L_c_s4_done")
        self.stamp(7, sG)
        a(f"s_cmp_ge_u32 {sIt}, 2")
        a("s_cbranch_scc1 L_c_next")
        def voff8(stride):
            a(f"v_lshrrev_b32 v{vWB}, 3, v2")
            a(f"v_lshlrev_b32 v{vWB}, 2, v{vWB}")
            a(f"v_add_u32 v{vWB}, v{vWB}, v1")
            a(f"v_mul_u32_u24 v{vWB}, {stride}, v{vWB}")
            a(f"v_and_b32 v{T}, 7, v2")
            a(f"v_lshlrev_b32 v{T}, 4, v{T}")
            a(f"v_add_u32 v{vWB}, v{vWB}, v{T}")
        a(f"s_cmp_eq_u32 {sIt}, 1")
        a("s_cbranch_scc1 L_c_ld2")
        clears()
        wo_loads(c.w1st, 40)
        a("s_branch L_c_next")
        a.label("L_c_ld2")
        a(f"s_cmp_lg_u32 {sWave}, 0")
        a("s_cbranch_scc1 L_c_noarrB")
        a("s_mov_b64 exec, 1")
        a(f"v_mov_b32 v{T}, 0")
        a(f"v_mov_b32 v{T+1}, 1")
        a(f"global_atomic_add v{T}, v{T+1}, s[{pDBG[0]}:{pDBG[1]}] offset:128 sc1")
        a("s_mov_b64 exec, -1")
        a.label("L_c_noarrB")
        a(f"s_cmp_eq_u32 {sIs3}, 1")
        a("s_cbranch_scc1 L_c_ldw2")
        self.srd(8, pW1, 640 * 3456)
        voff8(3456)
        a(f"s_mul_i32 {sT[0]}, {sWave}, {160 * 3456}")
        a(f"s_lshl_b32 {sT[1]}, {sC}, 7")
        a(f"s_add_u32 {sT[0]}, {sT[0]}, {sT[1]}")
        a(f"s_add_u32 {sT[1]}, {sT[0]}, {22 * 128}")
        for k in range(20):
            wload(W1A[k], vWB, sT[0], 0)
            if k < 19: a(f"s_add_u32 {sT[0]}, {sT[0]}, {8 * 3456}")
        a(f"s_cmp_lt_u32 {sC}, 5")
        a("s_cbranch_scc0 L_c_ldone")
        for k in range(20):
            wload(W1B[k], vWB, sT[1], 0)
            if k < 19: a(f"s_add_u32 {sT[1]}, {sT[1]}, {8 * 3456}")
        a("s_branch L_c_ldone")
        a.label("L_c_ldw2")
        self.srd(8, pW2, 1728 * 1280)
        voff8(1280)
        a(f"s_mul_i32 {sT[0]}, {sWave}, {432 * 1280}")
        a(f"s_sub_u32 {sT[1]}, {sC}, 22")
        a(f"s_lshl_b32 {sT[1]}, {sT[1]}, 7")
        a(f"s_add_u32 {sT[0]}, {sT[0]}, {sT[1]}")
        for k in range(54):
            wload(W2[k], vWB, sT[0], 0)
            if k < 53: a(f"s_add_u32 {sT[0]}, {sT[0]}, {8 * 1280}")
        a.label("L_c_ldone")
        self.cnt_wait(128, 32, T + 13)
        self.stamp(8, sG)
        a.label("L_c_next")
        a(f"s_add_u32 {sIt}, {sIt}, 1")
        a(f"s_cmp_lt_u32 {sIt}, 6")
        a("s_cbranch_scc1 L_c_loop")
        a("s_branch L_fin")

    def build(self):
        a = self.a; c = self.c
        a(f"; @launch grid=(256,1,1) block=(256,1,1) lds={LDS_TOTAL}")
        a('.amdgcn_target "amdgcn-amd-amdhsa--gfx950"')
        a(".text")
        a(f".globl {NAME}")
        a(".p2align 8")
        a(f".type {NAME},@function")
        a.label(NAME)
        a(f"s_cmp_ge_u32 {sW}, 256")
        a("s_cbranch_scc1 L_end")
        a("s_load_dwordx8 s[40:47], s[0:1], 0")
        a("s_load_dwordx4 s[48:51], s[0:1], 32")
        a("s_load_dwordx8 s[52:59], s[0:1], 48")
        a("s_load_dwordx2 s[60:61], s[0:1], 80")
        a("v_lshrrev_b32 v1, 6, v0")
        a(f"v_readfirstlane_b32 {sWave}, v1")
        a("v_and_b32 v0, 63, v0")
        if c.prof:
            a("v_mov_b32 v255, 0")
            self.vprof = 255
            self.stamp(0)
        a(f"s_cmp_ge_u32 {sW}, 224")
        a("s_cbranch_scc1 L_chain")
        self.streamer()
        self.chain()
        a.label("L_fin")
        self.stamp_flush()
        a.label("L_end")
        a("s_endpgm")
        a('.section .rodata,"a"')
        a(".p2align 6")
        a(f".amdhsa_kernel {NAME}")
        for l in (".amdhsa_next_free_vgpr 512", ".amdhsa_next_free_sgpr 102", ".amdhsa_accum_offset 256", ".amdhsa_group_segment_fixed_size 0",
                  ".amdhsa_kernarg_size 88", ".amdhsa_user_sgpr_count 2", ".amdhsa_user_sgpr_kernarg_segment_ptr 1",
                  ".amdhsa_system_sgpr_workgroup_id_x 1"):
            a(l)
        a(".end_amdhsa_kernel")
        return a.finish()

if __name__ == "__main__":
    ap = argparse.ArgumentParser()
    ap.add_argument("-o", default="g2.s")
    ap.add_argument("--prof", action="store_true")
    for k in ("window", "pcnt", "pq1", "pq2", "npre", "rotmul", "v1regcap", "pcnt2", "pq1b", "dp", "kp", "dp1", "kp1", "dps", "kps", "wq0", "w1st"):
        ap.add_argument(f"--{k}", type=int, default=getattr(Cfg, k))
    ap.add_argument("--pace", type=float, default=Cfg.pace)
    ap.add_argument("--kv", default=Cfg.kv)
    ap.add_argument("--wf", default=Cfg.wf)
    args = ap.parse_args()
    c = Cfg()
    for k, v in vars(args).items():
        if k != "o": setattr(c, k, v)
    g = G(c)
    txt = g.build()
    open(args.o, "w").write(txt)
    print("wrote", args.o, len(txt), "bytes;", txt.count("\n"), "lines; nops:", g.a.nnop)
```
